```python
import torch

def _softmax(x, axis=-1):
    return torch.softmax(x, dim=axis)

def _gelu(x):
    return torch.nn.functional.gelu(x, approximate='tanh')

def _silu(x):
    return torch.nn.functional.silu(x)

def _sigmoid(x):
    return torch.sigmoid(x)

def _layernorm(x, axis=-1, eps=1e-05):
    m = x.mean(dim=axis, keepdim=True)
    v = x.var(dim=axis, keepdim=True, unbiased=False)
    return (x - m) / torch.sqrt(v + eps)

def _scatter_add(tgt, idx, src, axis=0):
    return tgt.clone().index_add_(axis, idx, src)

def _segment_sum(src, seg, n):
    out = torch.zeros((n,) + src.shape[1:], dtype=src.dtype)
    return out.index_add_(0, seg, src)

def _pad(x, pw):
    flat = tuple((v for pair in reversed(pw) for v in pair))
    return torch.nn.functional.pad(x, flat)
kernel_name = 'standalone__autoregressive_conv_wavernn__speech'

def setup_inputs():

    _w = lambda a: (lambda t: t.to(torch.bfloat16) if t.is_floating_point() else t)(torch.as_tensor(a))
    B, T, D, K = (2, 4000, 512, 5)
    return {'x': _w((lambda *s: torch.randn(*s, dtype=torch.bfloat16) * 0.05)(B, T, D)), 'w': _w((lambda *s: torch.randn(*s, dtype=torch.bfloat16) * 0.05)(K, D, 2 * D))}

def reference(x, w):
    B, T, D = x.shape
    K = w.shape[0]
    dil = 2
    pad = (K - 1) * dil
    xp = _pad(x, ((0, 0), (pad, 0), (0, 0)))
    h = torch.einsum('btd,de->bte', xp[:, 0:T, :], w[0])
    for i in range(1, K):
        h = h + torch.einsum('btd,de->bte', xp[:, i * dil:i * dil + T, :], w[i])
    f, g = (h[..., :D].clone(), h[..., D:].clone())
    return torch.tanh(f) * _sigmoid(g)
```

```python
KNAME = "standalone__autoregressive_conv_wavernn__speech_kernel"

def header(grid, block, lds):
    return f"""; @launch grid=({grid},1,1) block=({block},1,1) lds={lds}
.amdgcn_target "amdgcn-amd-amdhsa--gfx950"
.text
.globl {KNAME}
.p2align 8
.type {KNAME},@function
{KNAME}:
"""

def footer(vgpr, accum, sgpr=102):
    return f"""
.section .rodata,"a"
.p2align 6
.amdhsa_kernel {KNAME}
  .amdhsa_next_free_vgpr {vgpr}
  .amdhsa_next_free_sgpr {sgpr}
  .amdhsa_accum_offset {accum}
  .amdhsa_group_segment_fixed_size 0
  .amdhsa_kernarg_size 40
  .amdhsa_user_sgpr_count 2
  .amdhsa_user_sgpr_kernarg_segment_ptr 1
  .amdhsa_system_sgpr_workgroup_id_x 1
.end_amdhsa_kernel
"""

class Asm:
    def __init__(self):
        self.l = []
    def __call__(self, s):
        self.l.append("    " + s)
    def label(self, s):
        self.l.append(s + ":")
    def raw(self, s):
        self.l.append(s)
    def text(self):
        return "\n".join(self.l) + "\n"
```

```python
import sys, argparse, re
from gen_common import *

XB = 16384; WB = 40960; WBASE = 2 * XB
LDS = WBASE + 3 * WB
ACC0 = 128
def accb(m, j): return ACC0 + (m * 2 + j) * 4
def acc(m, j): b = accb(m, j); return f"v[{b}:{b+3}]"
def XRb(s, idx): return s * 80 + idx * 4
def XR(s, idx): b = XRb(s, idx); return f"a[{b}:{b+3}]"
def WRb(s, i, j): return 160 + s * 40 + (i * 2 + j) * 4
def WR(s, i, j): b = WRb(s, i, j); return f"a[{b}:{b+3}]"

V_LANE = 1
V_XO = 2
V_WO = 6
V_XR = 8
V_XS = 10
V_WF0 = 12
V_WF = 14
V_WG = 15
V_O = 16
V_ST = 20
V_T = 24
S_X = 4; S_W = 8; S_O = 12
S_WAVE = 16; S_XOFF = 17; S_R = 18; S_CNT = 19
S_WS = 20
S_LX = 30; S_LW = 31; S_LWC = 35
S_C2 = 32; S_C1 = 33; S_CL = 34
S_T = 36
S_WSP = 48
S_CLK = 50; S_RT = 52
S_SO = 63
S_M0S = 98

class Op:
    def __init__(self, text, rd=None):
        self.text = text; self.rd = rd

def xdma_ops(par):
    L = []
    for a_ in range(4):
        pre = [f"s_add_u32 m0, s{S_LX}, {par * XB}"] if a_ == 0 else []
        off = f" offset:{a_*1024}" if a_ else ""
        L.append((pre, f"buffer_load_dwordx4 v{V_XO+a_}, s[{S_X}:{S_X+3}], s{S_XOFF} offen{off} lds"))
    return L
def wdma_ops():
    L = []
    for k in range(10):
        pre = [f"s_add_u32 m0, s{S_LWC}, {(k//4)*4096}"] if k % 4 == 0 else []
        off = f" offset:{(k%4)*1024}" if k % 4 else ""
        L.append((pre, f"buffer_load_dwordx4 v{V_WO}, s[{S_W}:{S_W+3}], s{S_WS + k} offen{off} lds"))
    return L
def w_advance():
    return [f"s_add_u32 s{S_W}, s{S_W}, 0x10000", f"s_addc_u32 s{S_W+1}, s{S_W+1}, 0",
            f"s_sub_u32 s{S_W+2}, s{S_W+2}, 0x10000"]
def rot():
    return [f"s_add_u32 s{S_R}, s{S_R}, {WB}", f"s_cmp_eq_u32 s{S_R}, {3*WB}", f"s_cselect_b32 s{S_R}, 0, s{S_R}"]

def xread(par, idx):
    q = idx - 4
    b = XRb(par, idx)
    if q < 0:
        return Op(f"ds_read_b128 {XR(par, idx)}, v{V_XS+par} offset:{(q+4)*1024}", ('a', b, b + 3))
    return Op(f"ds_read_b128 {XR(par, idx)}, v{V_XR+par} offset:{q*1024}", ('a', b, b + 3))
def wread(par, i, j):
    b = WRb(par, i, j)
    v = (V_WF if j == 0 else V_WG)
    return [Op(f"ds_read_b64_tr_b16 a[{b}:{b+1}], v{v} offset:{i*2048}", ('a', b, b + 1)),
            Op(f"ds_read_b64_tr_b16 a[{b+2}:{b+3}], v{v} offset:{i*2048+1024}", ('a', b + 2, b + 3))]
def read_list(par):
    L = []
    for i in range(5):
        L += wread(par, i, 0)
        L.append(xread(par, i))
    for i in range(5):
        L += wread(par, i, 1)
    for idx in range(5, 20):
        L.append(xread(par, idx))
    return L

def mfma_list(par, zero_c=False):
    L = []
    for m in range(16):
        for j in range(2):
            for i in range(5):
                c = "0" if (zero_c and i == 0) else acc(m, j)
                L.append((f"v_mfma_f32_16x16x32_bf16 {acc(m,j)}, {WR(par,i,j)}, {XR(par,m+i)}, {c}",
                          [('a', WRb(par,i,j), WRb(par,i,j)+3), ('a', XRb(par,m+i), XRb(par,m+i)+3)]))
    return L

class Emitter:
    def __init__(self, a):
        self.a = a; self.out = []
    def op(self, o):
        if isinstance(o, Op):
            self.a(o.text)
            if o.rd: self.out.append(o.rd)
        else:
            self.a(o)
            if o.startswith("s_waitcnt") and "lgkmcnt(0)" in o: self.out = []
    def need(self, regs):
        last = -1
        for k, (f, lo, hi) in enumerate(self.out):
            for (f2, lo2, hi2) in regs:
                if f == f2 and lo <= hi2 and lo2 <= hi: last = k
        if last >= 0:
            n = len(self.out) - 1 - last
            self.a(f"s_waitcnt lgkmcnt({min(n, 15)})")
            if n <= 15: self.out = self.out[last + 1:]
            else:
                self.out = self.out[-15:]
    def drain(self):
        if self.out:
            self.a("s_waitcnt lgkmcnt(0)"); self.out = []

def place(side, slot, ins):
    side.setdefault(slot, []).append(ins)

def stamp_ops(P, lane_expr):
    return []

def emit_mf(E, mf, side, extra=None):
    for s in side.get(-1, []): E.op(s)
    for k, (txt, regs) in enumerate(mf):
        E.need(regs)
        E.a(txt)
        for s in side.get(k, []): E.op(s)

def diag_begin(side, P):
    if P.diag:
        place(side, -1, f"s_memtime s[{S_CLK}:{S_CLK+1}]"); place(side, -1, f"s_memrealtime s[{S_RT}:{S_RT+1}]")
    if P.fine:
        place(side, -1, "s_memtime s[54:55]")
def diag_end(E, P, par, cnt_expr=None):
    a = E.a
    if P.diag or P.fine:
        E.op("s_waitcnt lgkmcnt(0)")
        a(f"s_mov_b32 s{S_M0S}, m0")
    if P.diag:
        a(f"s_add_u32 m0, s{S_CNT}, {par}")
        a(f"v_writelane_b32 v{V_ST}, s{S_CLK}, m0"); a(f"v_writelane_b32 v{V_ST+1}, s{S_RT}, m0")
    if P.fine:
        a(f"s_lshl_b32 s62, s{S_CNT}, 2")
        for k in range(4):
            a(f"s_add_u32 m0, s62, {par*4 + k}")
            a(f"v_writelane_b32 v{V_ST+2}, s{54+2*k}, m0")
    if P.diag or P.fine:
        a(f"s_mov_b32 m0, s{S_M0S}")

def barrier_ops(vm):
    return [f"s_waitcnt vmcnt({vm})", "s_barrier"]
def ring_ops():
    return ([f"s_add_u32 s{S_LWC}, s{S_LW}, s{S_R}"] + rot(),
            [f"v_add_u32 v{V_WF}, s{S_R}, v{V_WF0}"] + w_advance() + [f"v_xor_b32 v{V_WG}, 128, v{V_WF}"])

def wtimes(P):
    return [P.w0 + P.wstride * k for k in range(10)]

def emit_step(E, par, P, prev_w=True, barrier=True, xd=True, wd=True, reads=True, vm=None):
    mf = mfma_list(par)
    side = {}
    pb = P.pb
    diag_begin(side, P)
    wt = wtimes(P)
    wo = wdma_ops()
    if prev_w:
        for k, t in enumerate(wt):
            if pb + t >= 160:
                s = pb + t - 160
                assert s < pb - 1, (s, pb)
                for p_ in wo[k][0]: place(side, s - 1, p_)
                place(side, s, wo[k][1])
    if P.fine: place(side, pb - 1, "s_memtime s[56:57]")
    if barrier:
        for s in barrier_ops(vm if vm is not None else 10): place(side, pb - 1, s)
    if P.fine: place(side, pb - 1, "s_memtime s[58:59]")
    if barrier:
        r1, r2 = ring_ops()
        for s in r1: place(side, pb - 1, s)
        for s in r2: place(side, pb, s)
    if xd:
        xo = xdma_ops(par)
        for k in range(4):
            s = pb + P.x0 + P.xstride * k
            for p_ in xo[k][0]: place(side, s - 1, p_)
            place(side, s, xo[k][1])
        place(side, pb + P.x0 + P.xstride * 3 + 1, f"s_add_u32 s{S_XOFF}, s{S_XOFF}, 64")
    if wd:
        for k, t in enumerate(wt):
            if pb + t < 160:
                for p_ in wo[k][0]: place(side, pb + t - 1, p_)
                place(side, pb + t, wo[k][1])
    if reads:
        rl = read_list(1 - par)
        pos = pb + P.rd_start
        for k, ins in enumerate(rl):
            p_ = pos + (k * P.rd_num) // P.rd_den
            assert p_ < 160, p_
            place(side, p_, ins)
    if P.fine: place(side, min(pb + P.x0 + P.xstride * 3 + 3, 158), "s_memtime s[60:61]")
    emit_mf(E, mf, side)
    if P.endwait: E.drain()
    diag_end(E, P, par)

def emit_step0(E, P):
    par = 0
    mf = mfma_list(0, zero_c=True)
    side = {}
    pb = P.pb0
    diag_begin(side, P)
    for n_, idx in enumerate(range(5, 20)):
        place(side, min(n_ * P.x0rd, pb - 2), xread(0, idx))
    lst = []
    xo = xdma_ops(1); wo = wdma_ops()
    st1 = [("x", k) for k in range(4)] + [("w", k) for k in range(10)]
    st1 = st1[P.pre1:]
    s = P.d0
    for kind, k in st1:
        pre, ins = (xo if kind == "x" else wo)[k]
        if kind == "w" and k == 0 and P.pre1 <= 4:
            pass
        for p_ in pre: place(side, s - 1, p_)
        place(side, s, ins)
        if kind == "x" and k == 3: place(side, s, f"s_add_u32 s{S_XOFF}, s{S_XOFF}, 64")
        s += P.d0stride
    for x_ in w_advance(): place(side, s - P.d0stride + 1 if st1 else 0, x_)
    place(side, s - P.d0stride + 1 if st1 else 0, f"s_add_u32 s{S_LWC}, s{S_LW}, {2*WB}")
    s = max(s, 3)
    n2 = 0
    for k in range(10):
        pre, ins = wo[k]
        for p_ in pre: place(side, s - 1, p_)
        place(side, s, ins)
        n2 += 1
        s += P.d2stride
    assert s - P.d2stride < pb - 1, (s, pb)
    if P.fine: place(side, pb - 1, "s_memtime s[56:57]")
    place(side, pb - 1, "s_waitcnt lgkmcnt(0)")
    for x_ in barrier_ops(n2): place(side, pb - 1, x_)
    if P.fine: place(side, pb - 1, "s_memtime s[58:59]")
    r1, r2 = ring_ops()
    for x_ in r1: place(side, pb - 1, x_)
    for x_ in r2: place(side, pb, x_)
    xo = xdma_ops(0)
    s = pb + 2
    for k in range(4):
        for p_ in xo[k][0]: place(side, s - 1, p_)
        place(side, s, xo[k][1])
        s += P.x0stride
    place(side, s - P.x0stride + 1, f"s_add_u32 s{S_XOFF}, s{S_XOFF}, 64")
    wt = wtimes(P)
    nfirst = sum(1 for tt in wt if P.pb + tt < 160)
    for k in range(nfirst):
        pre, ins = wo[k]
        assert s < 159
        for p_ in pre: place(side, s - 1, p_)
        place(side, s, ins)
        s += P.x0stride
    rl = read_list(1)
    pos = pb + 1
    span = 159 - pos
    for k, ins in enumerate(rl):
        place(side, pos + (k * span) // len(rl), ins)
    if P.fine: place(side, 158, "s_memtime s[60:61]")
    emit_mf(E, mf, side)
    if P.endwait: E.drain()
    diag_end(E, P, 0)

def epi_ops(m, P):
    f = accb(m, 0); g = accb(m, 1)
    o = V_T + 12 * (m % 2)
    U = o; Wd = o + 4; Dn = o + 8
    pairset = (m // 2) % 2
    OUT = V_T + 24 + 4 * pairset + 2 * (m % 2)
    L = []
    for r in range(4): L.append(f"v_mul_f32 v{U+r}, s{S_C2}, v{f+r}")
    for r in range(4): L.append(f"v_min_f32 v{U+r}, s{S_CL}, v{U+r}")
    for r in range(4): L.append(f"v_mul_f32 v{Wd+r}, s{S_C1}, v{g+r}")
    for r in range(4): L.append(f"v_exp_f32 v{U+r}, v{U+r}")
    for r in range(4): L.append(f"v_exp_f32 v{Wd+r}, v{Wd+r}")
    for r in range(4): L.append(f"v_add_f32 v{Dn+r}, 1.0, v{U+r}")
    for r in range(4): L.append(f"v_fma_f32 v{Dn+r}, v{Dn+r}, v{Wd+r}, v{Dn+r}")
    for r in range(4): L.append(f"v_rcp_f32 v{Dn+r}, v{Dn+r}")
    for r in range(4): L.append(f"v_fma_f32 v{U+r}, v{U+r}, v{Dn+r}, -v{Dn+r}")
    L.append(f"v_cvt_pk_bf16_f32 v{OUT}, v{U}, v{U+1}")
    L.append(f"v_cvt_pk_bf16_f32 v{OUT+1}, v{U+2}, v{U+3}")
    if m % 2 == 1:
        B = V_T + 24 + 4 * pairset
        mm = m - 1
        if mm < 4: vo, so = V_O, mm * 2048
        elif mm < 14: vo, so = V_O + 1, (mm - 4) * 2048
        else: vo, so = V_O + 2, (mm - 4) * 2048
        L.append(f"s_mov_b32 s{S_SO}, {so}")
        L.append("s_nop 0")
        L.append(f"v_permlane16_swap_b32 v{B}, v{B+2}")
        L.append(f"v_permlane16_swap_b32 v{B+1}, v{B+3}")
        L.append(f"buffer_store_dwordx4 v[{B}:{B+3}], v{vo}, s[{S_O}:{S_O+3}], s{S_SO} offen {P.stflags}".rstrip())
    return L

def cost(ins):
    if ins.startswith(("v_exp", "v_rcp")): return 8
    if ins.startswith("v_"): return 4
    return 1

def emit_last(E, P, par=1):
    mf = mfma_list(par)
    side = {}
    diag_begin(side, P)
    if P.merge:
        for m in range(15):
            ops = epi_ops(m, P)
            tot = sum(cost(o) for o in ops)
            base = 10 * (m + 1)
            acc_ = 0
            if m == 0: place(side, base, "s_nop 1")
            for o in ops:
                slot = base + min(9, int(acc_ * 10 // tot))
                place(side, slot, o)
                acc_ += cost(o)
    emit_mf(E, mf, side)
    diag_end(E, P, par)
    a = E.a
    if P.diag:
        a(f"s_memtime s[{S_CLK}:{S_CLK+1}]"); a(f"s_memrealtime s[{S_RT}:{S_RT+1}]")
        a("s_waitcnt lgkmcnt(0)"); a("s_mov_b32 m0, 16")
        a(f"v_writelane_b32 v{V_ST}, s{S_CLK}, m0"); a(f"v_writelane_b32 v{V_ST+1}, s{S_RT}, m0")
    a("s_nop 7")
    for m in (range(15, 16) if P.merge else range(16)):
        for o in epi_ops(m, P): a(o)

def gen(P):
    a = Asm()
    E = Emitter(a)
    a.raw(header(256, 256, LDS))
    a("s_cmp_ge_u32 s2, 256")
    a("s_cbranch_scc1 L_end")
    a(f"s_load_dwordx4 s[{S_T}:{S_T+3}], s[0:1], 0")
    a(f"s_load_dwordx2 s[{S_T+4}:{S_T+5}], s[0:1], 16")
    if P.diag:
        a(f"s_load_dwordx2 s[{S_WSP}:{S_WSP+1}], s[0:1], 32")
        a(f"s_memrealtime s[{S_RT}:{S_RT+1}]")
    t = S_T + 6
    a(f"s_and_b32 s{t}, s2, 7")
    a(f"s_lshr_b32 s{t+1}, s2, 3")
    a(f"s_lshr_b32 s{t+2}, s{t}, 1")
    a(f"s_lshl_b32 s{t+2}, s{t+2}, 3")
    a(f"s_lshr_b32 s{t+3}, s{t+1}, 2")
    a(f"s_add_u32 s{t+2}, s{t+2}, s{t+3}")
    a(f"s_and_b32 s{t}, s{t}, 1")
    a(f"s_lshl_b32 s{t}, s{t}, 2")
    a(f"s_and_b32 s{t+1}, s{t+1}, 3")
    a(f"s_add_u32 s{t}, s{t}, s{t+1}")
    a(f"s_lshr_b32 s{t+1}, s{t+2}, 4")
    a(f"s_lshr_b32 s{t+3}, s{t+2}, 1")
    a(f"s_and_b32 s{t+3}, s{t+3}, 7")
    a(f"s_and_b32 s{t+2}, s{t+2}, 1")
    a(f"s_mul_i32 s{t+3}, s{t+3}, 500")
    a(f"s_add_u32 s{t+3}, s{t+3}, s{t+2}")
    a(f"s_sub_u32 s{t+3}, s{t+3}, 8")
    a(f"s_lshl_b32 s{t+3}, s{t+3}, 10")
    a(f"s_mul_i32 s{t+1}, s{t+1}, 4096000")
    a(f"s_lshl_b32 s{t}, s{t}, 7")
    a(f"v_and_b32 v{V_LANE}, 63, v0")
    a(f"v_lshrrev_b32 v{V_T}, 6, v0")
    a("s_nop 0")
    a(f"v_readfirstlane_b32 s{S_WAVE}, v{V_T}")
    T = V_T
    a(f"v_lshrrev_b32 v{T}, 2, v{V_LANE}")
    a(f"v_lshrrev_b32 v{T+1}, 3, v{V_LANE}")
    a(f"v_and_b32 v{T+1}, 2, v{T+1}")
    a(f"v_and_b32 v{T+2}, 3, v{V_LANE}")
    a(f"v_xor_b32 v{T+1}, v{T+1}, v{T+2}")
    a(f"v_lshlrev_b32 v{T+1}, 4, v{T+1}")
    a(f"v_lshlrev_b32 v{T}, 15, v{T}")
    a(f"v_add_u32 v{T}, v{T}, v{T+1}")
    a(f"s_lshl_b32 s{t+4}, s{S_WAVE}, 13")
    a(f"s_add_u32 s{t+4}, s{t+4}, s{t+3}")
    a(f"v_add_u32 v{V_XO}, s{t+4}, v{T}")
    for k in range(1, 4):
        a(f"v_add_u32 v{V_XO+k}, {k*1024}, v{V_XO}")
    a(f"v_lshrrev_b32 v{T}, 4, v{V_LANE}")
    a(f"s_and_b32 s{t+4}, s{S_WAVE}, 1")
    a(f"s_lshl_b32 s{t+4}, s{t+4}, 2")
    a(f"v_or_b32 v{T+1}, s{t+4}, v{T}")
    a(f"v_bfe_u32 v{T+2}, v{V_LANE}, 1, 3")
    a(f"v_xor_b32 v{T+1}, v{T+1}, v{T+2}")
    a(f"v_and_b32 v{T+2}, 3, v{T+1}")
    a(f"v_lshlrev_b32 v{T+2}, 5, v{T+2}")
    a(f"v_lshrrev_b32 v{T+1}, 2, v{T+1}")
    a(f"v_lshlrev_b32 v{T+1}, 10, v{T+1}")
    a(f"v_add_u32 v{T+1}, v{T+1}, v{T+2}")
    a(f"v_and_b32 v{T+2}, 1, v{V_LANE}")
    a(f"v_lshlrev_b32 v{T+2}, 4, v{T+2}")
    a(f"v_add_u32 v{T+1}, v{T+1}, v{T+2}")
    a(f"v_lshlrev_b32 v{T}, 11, v{T}")
    a(f"v_add_u32 v{T+1}, v{T+1}, v{T}")
    a(f"s_lshl_b32 s{t+4}, s{S_WAVE}, 14")
    a(f"s_add_u32 s{t+4}, s{t+4}, s{t}")
    a(f"v_add_u32 v{V_WO}, s{t+4}, v{T+1}")
    for k in range(10):
        a(f"s_mov_b32 s{S_WS + k}, {(k//2)*1048576 + (k%2)*8192 - (k%4)*1024}")
    a(f"s_lshl_b32 s{S_LX}, s{S_WAVE}, 12")
    a(f"s_mul_i32 s{S_LW}, s{S_WAVE}, 10240")
    a(f"s_add_u32 s{S_LW}, s{S_LW}, {WBASE}")
    a(f"s_mov_b32 s{S_XOFF}, 0")
    a(f"s_mov_b32 s{S_LWC}, s{S_LW}")
    a("s_waitcnt lgkmcnt(0)")
    if P.diag: a("s_memrealtime s[84:85]")
    a(f"s_add_u32 s{S_X}, s{S_T}, s{t+1}")
    a(f"s_addc_u32 s{S_X+1}, s{S_T+1}, 0")
    a(f"s_and_b32 s{S_X+1}, s{S_X+1}, 0xffff")
    a(f"s_mov_b32 s{S_X+2}, 4096000")
    a(f"s_mov_b32 s{S_X+3}, 0x20000")
    a(f"s_mov_b32 s{S_W}, s{S_T+2}")
    a(f"s_and_b32 s{S_W+1}, s{S_T+3}, 0xffff")
    a(f"s_mov_b32 s{S_W+2}, 5242880")
    a(f"s_mov_b32 s{S_W+3}, 0x20000")
    order = ([("x", k) for k in range(4)] + [("w", k) for k in range(10)]) if P.xfirst else ([("w", k) for k in range(10)] + [("x", k) for k in range(4)])
    xo = xdma_ops(0); wo = wdma_ops()
    for kind, k in order:
        pre, ins = (xo if kind == "x" else wo)[k]
        for p_ in pre: a(p_); a("s_nop 0")
        a(ins)
    a(f"s_add_u32 s{S_XOFF}, s{S_XOFF}, 64")
    for s in w_advance(): a(s)
    a(f"s_add_u32 s{S_LWC}, s{S_LW}, {WB}")
    if P.diag: a("s_memrealtime s[86:87]")
    a(f"s_add_u32 s{S_O}, s{S_T+4}, s{t+1}")
    a(f"s_addc_u32 s{S_O+1}, s{S_T+5}, 0")
    a(f"s_and_b32 s{S_O+1}, s{S_O+1}, 0xffff")
    a(f"s_mov_b32 s{S_O+2}, 4096000")
    a(f"s_mov_b32 s{S_O+3}, 0x20000")
    a(f"s_mov_b32 s{S_R}, 0")
    a(f"v_lshrrev_b32 v{T}, 4, v{V_LANE}")
    a(f"v_and_b32 v{T+1}, 15, v{V_LANE}")
    a(f"v_lshrrev_b32 v{T+2}, 1, v{T+1}")
    a(f"v_and_b32 v{T+2}, 2, v{T+2}")
    a(f"v_xor_b32 v{T+2}, v{T+2}, v{T}")
    a(f"v_lshlrev_b32 v{T+2}, 4, v{T+2}")
    a(f"v_lshlrev_b32 v{T+3}, 6, v{T+1}")
    a(f"v_add_u32 v{V_XR}, v{T+2}, v{T+3}")
    a(f"v_add_u32 v{V_XR+1}, {XB}, v{V_XR}")
    a(f"v_subrev_u32 v{T+3}, 1, v{T+1}")
    a(f"v_lshrrev_b32 v{T+2}, 1, v{T+3}")
    a(f"v_and_b32 v{T+2}, 2, v{T+2}")
    a(f"v_xor_b32 v{T+2}, v{T+2}, v{T}")
    a(f"v_lshlrev_b32 v{T+2}, 4, v{T+2}")
    a(f"v_lshlrev_b32 v{T+3}, 6, v{T+3}")
    a(f"v_add_u32 v{T+2}, v{T+2}, v{T+3}")
    a(f"v_add_u32 v{V_XS}, {12*1024}, v{T+2}")
    a(f"v_add_u32 v{V_XS+1}, {XB + 12*1024}, v{T+2}")
    a(f"v_lshrrev_b32 v{T+2}, 2, v{T+1}")
    a(f"v_and_b32 v{T+3}, 1, v{T}")
    a(f"v_lshlrev_b32 v{T+3}, 2, v{T+3}")
    a(f"v_or_b32 v{T+3}, v{T+3}, v{T+2}")
    a(f"v_xor_b32 v{T+3}, s{S_WAVE}, v{T+3}")
    a(f"v_lshlrev_b32 v{T+3}, 5, v{T+3}")
    a(f"v_lshlrev_b32 v{T+2}, 8, v{T+2}")
    a(f"v_add_u32 v{T+3}, v{T+3}, v{T+2}")
    a(f"v_mul_u32_u24 v{T+2}, 10240, v{T}")
    a(f"v_add_u32 v{T+3}, v{T+3}, v{T+2}")
    a(f"v_and_b32 v{T+2}, 3, v{T+1}")
    a(f"v_lshlrev_b32 v{T+2}, 3, v{T+2}")
    a(f"v_add_u32 v{T+3}, v{T+3}, v{T+2}")
    a(f"v_add_u32 v{V_WF0}, {WBASE}, v{T+3}")
    a(f"v_mov_b32 v{V_WF}, v{V_WF0}")
    a(f"v_xor_b32 v{V_WG}, 128, v{V_WF0}")
    a(f"v_lshlrev_b32 v{T+2}, 15, v{T+1}")
    a(f"v_and_b32 v{T+3}, 1, v{T}")
    a(f"v_lshlrev_b32 v{T+3}, 11, v{T+3}")
    a(f"v_add_u32 v{T+2}, v{T+2}, v{T+3}")
    a(f"v_lshrrev_b32 v{T+3}, 1, v{T}")
    a(f"v_lshlrev_b32 v{T+3}, 4, v{T+3}")
    a(f"v_add_u32 v{T+2}, v{T+2}, v{T+3}")
    a(f"s_lshl_b32 s{t+4}, s{S_WAVE}, 5")
    a(f"s_add_u32 s{t+4}, s{t+4}, s{t}")
    a(f"s_add_u32 s{t+4}, s{t+4}, s{t+3}")
    a(f"v_add_u32 v{T+2}, s{t+4}, v{T+2}")
    a(f"v_add_u32 v{V_O+1}, 8192, v{T+2}")
    a(f"v_mov_b32 v{T+3}, 0x80000000")
    a(f"v_cmp_eq_u32 vcc, 0, v{T+1}")
    a("s_nop 1")
    a(f"v_cndmask_b32 v{V_O}, v{T+2}, v{T+3}, vcc")
    a(f"v_cmp_eq_u32 vcc, 15, v{T+1}")
    a("s_nop 1")
    a(f"v_cndmask_b32 v{V_O+2}, v{V_O+1}, v{T+3}, vcc")
    a(f"s_mov_b32 s{S_C2}, 0x4038aa3b")
    a(f"s_mov_b32 s{S_C1}, 0xbfb8aa3b")
    a(f"s_mov_b32 s{S_CL}, 0x41f00000")
    if P.diag:
        a(f"v_mov_b32 v{V_ST}, 0")
        a(f"v_mov_b32 v{V_ST+1}, 0")
        a(f"s_mov_b32 m0, 63")
        a(f"v_writelane_b32 v{V_ST+1}, s{S_RT}, m0")
        a("s_memrealtime s[88:89]")
    a("s_waitcnt vmcnt(0)")
    if P.diag: a("s_memrealtime s[90:91]")
    a("s_barrier")
    if P.diag: a("s_memrealtime s[92:93]")
    rl = read_list(0)[:25]
    xo = xdma_ops(1); wo = wdma_ops()
    st1 = [("x", k) for k in range(4)] + [("w", k) for k in range(10)]
    pre1 = st1[:P.pre1]
    for n_, o in enumerate(rl):
        E.op(o)
        if pre1 and n_ % P.pre1every == P.pre1every - 1:
            kind, k = pre1.pop(0)
            pre, ins = (xo if kind == "x" else wo)[k]
            for p_ in pre: a(p_); a("s_nop 0")
            a(ins)
            if kind == "x" and k == 3: a(f"s_add_u32 s{S_XOFF}, s{S_XOFF}, 64")
    for kind, k in pre1:
        pre, ins = (xo if kind == "x" else wo)[k]
        for p_ in pre: a(p_); a("s_nop 0")
        a(ins)
        if kind == "x" and k == 3: a(f"s_add_u32 s{S_XOFF}, s{S_XOFF}, 64")
    if P.diag:
        a("s_waitcnt lgkmcnt(0)"); E.out = []
        a(f"s_mov_b32 s{S_M0S}, m0")
        for k, sr in enumerate([84, 86, 88, 90, 92]):
            a(f"v_writelane_b32 v{V_ST+1}, s{sr}, {32+k}")
    a(f"s_mov_b32 s{S_CNT}, 0")
    emit_step0(E, P)
    E.drain()
    a(f"s_mov_b32 s{S_CNT}, 0")
    a.label("L_loop")
    wt = wtimes(P)
    nfirst = sum(1 for tt in wt if P.pb + tt < 160)
    emit_step(E, 1, P) if not P.diag else emit_step_diag(E, 1, P, 1)
    E.drain()
    emit_step(E, 0, P) if not P.diag else emit_step_diag(E, 0, P, 2)
    E.drain()
    a(f"s_add_u32 s{S_CNT}, s{S_CNT}, 2")
    a(f"s_cmp_lt_u32 s{S_CNT}, 12")
    a("s_cbranch_scc1 L_loop")
    (emit_step(E, 1, P, wd=False) if not P.diag else emit_step_diag(E, 1, P, 1, wd=False))
    E.drain()
    (emit_step(E, 0, P, prev_w=False, xd=False, wd=False, vm=0) if not P.diag else emit_step_diag(E, 0, P, 2, prev_w=False, xd=False, wd=False, vm=0))
    E.drain()
    if P.diag: a(f"s_add_u32 s{S_CNT}, s{S_CNT}, 2")
    emit_last(E, P, 1)
    if P.diag:
        a("s_waitcnt vmcnt(0)")
        a(f"s_memtime s[{S_CLK}:{S_CLK+1}]"); a(f"s_memrealtime s[{S_RT}:{S_RT+1}]")
        a("s_waitcnt lgkmcnt(0)"); a("s_mov_b32 m0, 17")
        a(f"v_writelane_b32 v{V_ST}, s{S_CLK}, m0"); a(f"v_writelane_b32 v{V_ST+1}, s{S_RT}, m0")
        a(f"s_lshl_b32 s{S_T}, s2, 2"); a(f"s_add_u32 s{S_T}, s{S_T}, s{S_WAVE}")
        a(f"s_lshl_b32 s{S_T}, s{S_T}, 9")
        a(f"v_lshlrev_b32 v{V_T}, 3, v{V_LANE}")
        a(f"v_add_u32 v{V_T}, s{S_T}, v{V_T}")
        a(f"global_store_dwordx2 v{V_T}, v[{V_ST}:{V_ST+1}], s[{S_WSP}:{S_WSP+1}]")
        if P.fine:
            a(f"v_lshrrev_b32 v{V_T}, 1, v{V_T}")
            a(f"v_add_u32 v{V_T}, 0x100000, v{V_T}")
            a(f"global_store_dword v{V_T}, v{V_ST+2}, s[{S_WSP}:{S_WSP+1}]")
    a.label("L_end")
    a("s_endpgm")
    a.raw(footer(496, 256))
    return a.text()

def emit_step_diag(E, par, P, laneoff, **kw):
    global diag_end
    old = diag_end
    def de(E_, P_, par_, cnt_expr=None):
        old(E_, P_, laneoff)
    diag_end = de
    try:
        emit_step(E, par, P, **kw)
    finally:
        diag_end = old

def parser():
    ap = argparse.ArgumentParser()
    ap.add_argument("-o", default="k3.s")
    for f in ["diag", "fine", "xfirst"]:
        ap.add_argument("--" + f, action="store_true")
    ap.add_argument("--nomerge", dest="merge", action="store_false")
    ap.add_argument("--noendwait", dest="endwait", action="store_false")
    ap.add_argument("--stflags", type=str, default="")
    for k, d in dict(pb=80, x0=2, xstride=4, w0=80, wstride=8, rd_start=16, rd_num=3, rd_den=2,
                     pb0=120, x0rd=3, pre1=4, pre1every=6, d0=1, d0stride=4, d2stride=5, x0stride=4).items():
        ap.add_argument("--" + k, type=int, default=d)
    return ap

if __name__ == "__main__":
    P = parser().parse_args()
    open(P.o, "w").write(gen(P))
```

```python
import sys, argparse, re
from gen_common import *

XB = 16384; WB = 40960; WBASE = 2 * XB
LDS = WBASE + 3 * WB
ACC0 = 128
def accb(m, j): return ACC0 + (m * 2 + j) * 4
def acc(m, j): b = accb(m, j); return f"v[{b}:{b+3}]"
def XRb(s, idx): return s * 80 + idx * 4
def XR(s, idx): b = XRb(s, idx); return f"a[{b}:{b+3}]"
def WRb(s, i, j): return 160 + s * 40 + (i * 2 + j) * 4
def WR(s, i, j): b = WRb(s, i, j); return f"a[{b}:{b+3}]"

V_LANE = 1
V_XO = 2
V_WO = 6
V_XR = 8
V_XS = 10
V_WF0 = 12
V_WF = 14
V_WG = 15
V_O = 16
V_ST = 20
V_T = 24
S_X = 4; S_W = 8; S_O = 12
S_WAVE = 16; S_XOFF = 17; S_A = 18; S_CNT = 19
S_WS = 20
S_LX = 30; S_LW = 31; S_LWC = 35
S_C2 = 32; S_C1 = 33; S_CL = 34
S_T = 36
S_WSP = 48
S_CLK = 50; S_RT = 52
S_B = 62
S_SO = 63
S_M0S = 98

ALLOWED = {"", "s", "ss", "sss", "d", "sd", "ds", "dv", "sdv", "sds", "v", "vv", "sv", "svv", "ssv", "e", "se", "m"}

class It:
    def __init__(self, kind, text, rd=None, m0=None):
        self.kind = kind; self.text = text; self.rd = rd; self.m0 = m0
def S(t): return It("s", t)
def V(t): return It("v", t)

def xdma(par, a_):
    off = f" offset:{a_*1024}" if a_ else ""
    return It("m", f"buffer_load_dwordx4 v{V_XO+a_}, s[{S_X}:{S_X+3}], s{S_XOFF} offen{off} lds", m0=f"s_add_u32 m0, s{S_LX}, {par * XB}")
def wdma(k):
    off = f" offset:{(k%4)*1024}" if k % 4 else ""
    return It("m", f"buffer_load_dwordx4 v{V_WO}, s[{S_W}:{S_W+3}], s{S_WS + k} offen{off} lds", m0=f"s_add_u32 m0, s{S_LWC}, {(k//4)*4096}")
def w_advance():
    return [[S(f"s_add_u32 s{S_W}, s{S_W}, 0x10000"), S(f"s_addc_u32 s{S_W+1}, s{S_W+1}, 0")],
            [S(f"s_sub_u32 s{S_W+2}, s{S_W+2}, 0x10000")]]

def xread(par, idx):
    q = idx - 4
    b = XRb(par, idx)
    if q < 0:
        return It("d", f"ds_read_b128 {XR(par, idx)}, v{V_XS+par} offset:{(q+4)*1024}", ('a', b, b + 3))
    return It("d", f"ds_read_b128 {XR(par, idx)}, v{V_XR+par} offset:{q*1024}", ('a', b, b + 3))
def wread(par, i, j):
    b = WRb(par, i, j)
    v = (V_WF if j == 0 else V_WG)
    return [It("d", f"ds_read_b64_tr_b16 a[{b}:{b+1}], v{v} offset:{i*2048}", ('a', b, b + 1)),
            It("d", f"ds_read_b64_tr_b16 a[{b+2}:{b+3}], v{v} offset:{i*2048+1024}", ('a', b + 2, b + 3))]
def read_list(par, nx=20):
    L = []
    for i in range(5):
        L += wread(par, i, 0)
        L.append(xread(par, i))
    for i in range(5):
        L += wread(par, i, 1)
    for idx in range(5, nx):
        L.append(xread(par, idx))
    return L

def mf(par, m, j, i, zero_c=False):
    c = "0" if zero_c else acc(m, j)
    return (f"v_mfma_f32_16x16x32_bf16 {acc(m,j)}, {WR(par,i,j)}, {XR(par,m+i)}, {c}",
            [('a', WRb(par,i,j), WRb(par,i,j)+3), ('a', XRb(par,m+i), XRb(par,m+i)+3)])
def chain(par, m, taps=range(5), rev=False):
    L = []
    for j in range(2):
        t = list(taps)
        if rev and j == 1: t = t[::-1]
        L += [mf(par, m, j, i) for i in t]
    return L
def mfma_list(par, P):
    L = []
    for m in range(16): L += chain(par, m, rev=P.rev)
    return L

class Sched:
    def __init__(self, mfl, name=""):
        self.mf = mfl; self.n = len(mfl); self.g = {k: [] for k in range(-1, self.n)}; self.name = name
    def pat(self, items): return "".join(i.kind for i in items)
    def canon(self, items):
        d = [i for i in items if i.kind == "d"]
        if not d:
            s = [i for i in items if i.kind == "s"]; r = [i for i in items if i.kind != "s"]
            return s + r
        s = [i for i in items if i.kind == "s"]; r = [i for i in items if i.kind not in "sd"]
        return s[:1] + d + s[1:] + r
    def fits(self, k, group):
        if k == -1: return True
        return self.pat(self.canon(self.g[k] + group)) in ALLOWED
    def at(self, k, group, force=False):
        if isinstance(group, It): group = [group]
        kk = k
        if not force:
            while kk < self.n - 1 and not self.fits(kk, group): kk += 1
            if not self.fits(kk, group): kk = k
        self.g[kk] = self.g[kk] + group
        return kk
    def dma(self, k, it, prev_m0):
        kk = k
        while True:
            ok = self.pat(self.g[kk]) == "" and kk < self.n
            if ok and it.m0 != prev_m0:
                ok = kk - 1 >= -1 and self.fits(kk - 1, [S(it.m0)]) and not any(x.kind == "m" for x in self.g[kk - 1])
            if ok: break
            kk += 1
            assert kk < self.n, ("no room for dma", self.name, k)
        if it.m0 != prev_m0: self.g[kk - 1] = self.g[kk - 1] + [S(it.m0)]
        self.g[kk] = [it]
        return kk
    def spread(self, items, g0, g1):
        last = g0 - 1
        n = len(items)
        for q, it in enumerate(items):
            want = max(g0 + (q * (g1 - g0 + 1)) // n, last + 1)
            kk = want
            while kk < self.n and not self.fits(kk, [it]): kk += 1
            if kk >= self.n:
                kk = min(want, self.n - 1)
            self.g[kk] = self.g[kk] + [it]
            last = kk
        return last

def vregs(txt):
    r = set()
    for m in re.finditer(r"(?<![a-z_])v\[(\d+):(\d+)\]", txt): r.update(range(int(m.group(1)), int(m.group(2)) + 1))
    for m in re.finditer(r"(?<![a-z_\[])v(\d+)", txt): r.add(int(m.group(1)))
    return r

class Emitter:
    def __init__(self, a, verbose=False):
        self.a = a; self.out = []; self.verbose = verbose; self.fallback = 0; self.viol = 0
        self.count = 0; self.mfw = {}; self.nops = 0
    def tick(self, txt):
        m = re.match(r"s_nop (\d+)", txt)
        self.count += (int(m.group(1)) + 1) if m else 1
    def mfma(self, txt):
        self.a(txt); self.tick(txt)
        m = re.match(r"v_mfma\S+ v\[(\d+):(\d+)\]", txt)
        for r in range(int(m.group(1)), int(m.group(2)) + 1): self.mfw[r] = self.count
    def valu_hazard(self, txt):
        need = 0
        for r in vregs(txt):
            if r in self.mfw:
                dist = self.count - self.mfw[r]
                need = max(need, 8 - dist)
        if need > 0:
            self.nops += 1
            if self.verbose: print(f"  hazard nop {need} before {txt}", file=sys.stderr)
            t = f"s_nop {need - 1}"
            self.a(t); self.tick(t)
    def op(self, o):
        if isinstance(o, It):
            if o.kind in "vem": self.valu_hazard(o.text)
            self.a(o.text); self.tick(o.text)
            if o.rd: self.out.append(o.rd)
            txt = o.text
        else:
            self.a(o); self.tick(o); txt = o
        if txt.startswith("s_waitcnt"):
            m = re.search(r"lgkmcnt\((\d+)\)", txt)
            if m:
                n = int(m.group(1))
                self.out = self.out[len(self.out) - n:] if n < len(self.out) else self.out
                if n == 0: self.out = []
    def need(self, regs, where=""):
        last = -1
        for k, (f, lo, hi) in enumerate(self.out):
            for (f2, lo2, hi2) in regs:
                if f == f2 and lo <= hi2 and lo2 <= hi: last = k
        if last >= 0:
            n = len(self.out) - 1 - last
            self.fallback += 1
            if self.verbose: print(f"  fallback wait lgkmcnt({n}) at {where}", file=sys.stderr)
            self.op(f"s_waitcnt lgkmcnt({min(n, 15)})")
    def run(self, sch, canon=True):
        for g, items in sch.g.items():
            for it in items:
                if it.rd:
                    f, lo, hi = it.rd
                    for k in range(0, g + 1):
                        for (f2, lo2, hi2) in sch.mf[k][1]:
                            assert not (f == f2 and lo <= hi2 and lo2 <= hi), f"read after use: {sch.name} gap {g} mfma {k}: {it.text}"
        for it in sch.g[-1]: self.op(it)
        for k, (txt, regs) in enumerate(sch.mf):
            self.need(regs, f"{sch.name}:{k} (late)")
            self.mfma(txt)
            if k + 1 < sch.n: self.need(sch.mf[k + 1][1], f"{sch.name}:{k}")
            items = sch.canon(sch.g[k]) if canon else sch.g[k]
            p = sch.pat(items)
            if canon and p not in ALLOWED:
                self.viol += 1
                if self.verbose: print(f"  pattern {p} at {sch.name}:{k}", file=sys.stderr)
            for it in items: self.op(it)

def diag_open(sch, P):
    if P.diag:
        sch.g[-1] = [S(f"s_memtime s[{S_CLK}:{S_CLK+1}]"), S(f"s_memrealtime s[{S_RT}:{S_RT+1}]")] + sch.g[-1]
def diag_close(E, P, laneoff):
    if not P.diag: return
    a = E.a
    E.op("s_waitcnt lgkmcnt(0)")
    a(f"s_mov_b32 s{S_M0S}, m0")
    a(f"s_add_u32 m0, s{S_CNT}, {laneoff}")
    a(f"v_writelane_b32 v{V_ST}, s{S_CLK}, m0"); a(f"v_writelane_b32 v{V_ST+1}, s{S_RT}, m0")
    a(f"s_mov_b32 m0, s{S_M0S}")

def ring_update(sch, g0):
    k = sch.at(g0, [S(f"s_mov_b32 s{S_A}, s{S_B}"), S(f"s_add_u32 s{S_B}, s{S_B}, {WB}")])
    k = sch.at(k + 1, [S(f"s_cmp_eq_u32 s{S_B}, {3*WB}"), S(f"s_cselect_b32 s{S_B}, 0, s{S_B}")])
    k = sch.at(k + 1, [S(f"s_add_u32 s{S_LWC}, s{S_LW}, s{S_B}")])
    return k

def build_step(par, P, name, wd=True, xd=True, vm=10, barrier=True, reads=True, mfl=None, pb=None, rd_end=None, rl=None,
               m0prev=None, ring=True, late=True, late_end=None):
    mfl = mfl if mfl is not None else mfma_list(par, P)
    sch = Sched(mfl, name)
    pb = P.pb if pb is None else pb
    n = sch.n
    m0 = m0prev
    last = 0
    if wd:
        for k in range(10):
            it = wdma(k)
            last = sch.dma(P.w0 + P.wstride * k, it, m0); m0 = it.m0
        assert last < pb - 1, (last, pb)
        adv = w_advance()
        kk = sch.at(last + 1, adv[0]); sch.at(kk, adv[1])
    if late:
        le = P.late_end if late_end is None else late_end
        kk = sch.spread([xread(par, idx) for idx in range(P.L, 20)], P.late0, le)
        sch.at(max(kk + P.latewait, 0), S("s_waitcnt lgkmcnt(0)"))
    if reads:
        kk = sch.at(min(P.va, pb - 6), V(f"v_add_u32 v{V_WF}, s{S_A}, v{V_WF0}"))
        assert kk + 2 < pb
        sch.at(kk + 1, V(f"v_xor_b32 v{V_WG}, 128, v{V_WF}"))
    if barrier:
        sch.g[pb - 1] = sch.g[pb - 1] + [S(f"s_waitcnt vmcnt({vm}) lgkmcnt(0)"), S("s_barrier")]
    if xd:
        for k in range(4):
            it = xdma(par, k)
            last = sch.dma(pb + P.x0 + P.xstride * k, it, m0); m0 = it.m0
        sch.at(last + 1, S(f"s_add_u32 s{S_XOFF}, s{S_XOFF}, 64"))
    if ring: ring_update(sch, pb + P.ring0)
    if reads:
        rl = rl if rl is not None else read_list(1 - par, P.L)
        sch.spread(rl, pb + P.rd0, (n - 1 - P.rdtail) if rd_end is None else rd_end)
        sch.g[n - 1] = sch.g[n - 1] + [S("s_waitcnt lgkmcnt(0)")]
    return sch, m0

def build_step0(P):
    mfl = [mf(0, m, j, 0, zero_c=True) for m in range(16) for j in range(2)]
    mfl += [mf(0, m, j, 1) for m in range(16) for j in range(2)]
    for m in range(16): mfl += chain(0, m, taps=[2, 3, 4])
    sch = Sched(mfl, "step0")
    m0 = P._m0
    ra = [xread(0, idx) for idx in range(P.npre, 20)]
    st1 = [xdma(1, k) for k in range(4)] + [wdma(k) for k in range(10)]
    gB = P.gB
    pos = []
    g = P.d0
    nB = 0
    for q, it in enumerate(st1):
        g = sch.dma(g, it, m0); m0 = it.m0
        pos.append(g)
        if g < gB: nB += 1
        if q == 3: sch.at(g + 1, S(f"s_add_u32 s{S_XOFF}, s{S_XOFF}, 64"))
        g += P.d0stride
    last1 = pos[-1]
    sch.g[gB] = sch.g[gB] + [S(f"s_waitcnt vmcnt({nB})"), S("s_barrier")]
    assert not any(x.kind == "m" for x in sch.g[gB])
    sch.spread(ra, 0, P.rAend)
    rb = wread(0, 1, 0) + wread(0, 1, 1)
    for j in range(2):
        for i in (2, 3, 4): rb += wread(0, i, j)
    lastb = sch.spread(rb, gB + 1, gB + P.rBlen)
    sch.at(lastb + 6, S("s_waitcnt lgkmcnt(0)"))
    adv = w_advance()
    kk = sch.at(last1 + 1, adv[0]); kk = sch.at(kk, adv[1])
    kk = sch.at(kk, S(f"s_add_u32 s{S_LWC}, s{S_LW}, {2*WB}"))
    g = max(kk + 2, P.d2)
    pb = P.pb0
    n2 = 0; m0 = None
    w2 = [wdma(k) for k in range(10)]
    rest = []
    for it in w2:
        if g < pb - 2:
            g = sch.dma(g, it, m0); m0 = it.m0; n2 += 1
            g += P.d2stride
        else: rest.append(it)
    kk = sch.at(lastb + 2, V(f"v_add_u32 v{V_WF}, {WB}, v{V_WF0}"))
    kk = sch.at(kk + 1, V(f"v_xor_b32 v{V_WG}, 128, v{V_WF}"))
    assert kk < pb - 1
    sch.g[pb - 1] = sch.g[pb - 1] + [S(f"s_waitcnt vmcnt({n2}) lgkmcnt(0)"), S("s_barrier")]
    g = pb + 1
    for k in range(4):
        it = xdma(0, k)
        g = sch.dma(g, it, m0); m0 = it.m0
        g += P.x0stride
    sch.at(g - P.x0stride + 1, S(f"s_add_u32 s{S_XOFF}, s{S_XOFF}, 64"))
    for it in rest:
        g = sch.dma(g, it, m0); m0 = it.m0
        g += P.x0stride
    adv = w_advance()
    kk = sch.at(g, adv[0]); kk = sch.at(kk, adv[1])
    kk = sch.at(kk, [S(f"s_mov_b32 s{S_A}, {2*WB}"), S(f"s_mov_b32 s{S_B}, 0")])
    kk = sch.at(kk, S(f"s_mov_b32 s{S_LWC}, s{S_LW}"))
    sch.spread(read_list(1, P.L), pb, sch.n - 1 - P.rdtail0)
    sch.g[sch.n - 1] = sch.g[sch.n - 1] + [S("s_waitcnt lgkmcnt(0)")]
    return sch, m0

def epi1(m):
    f = accb(m, 0); g = accb(m, 1)
    o = V_T + 8 * (m % 2); U = o; Wd = o + 4
    L = []
    for r in range(4): L.append(V(f"v_mul_f32 v{U+r}, s{S_C2}, v{f+r}"))
    for r in range(4): L.append(V(f"v_mul_f32 v{Wd+r}, s{S_C1}, v{g+r}"))
    for r in range(4): L.append(V(f"v_min_f32 v{U+r}, s{S_CL}, v{U+r}"))
    for r in range(4): L.append(It("e", f"v_exp_f32 v{Wd+r}, v{Wd+r}"))
    for r in range(4): L.append(It("e", f"v_exp_f32 v{U+r}, v{U+r}"))
    return L
def epi2(m, P):
    o = V_T + 8 * (m % 2); U = o; Wd = o + 4
    Dn = V_T + 16
    pairset = (m // 2) % 2
    OUT = V_T + 20 + 4 * pairset + 2 * (m % 2)
    L = []
    for r in range(4): L.append(V(f"v_add_f32 v{Dn+r}, 1.0, v{U+r}"))
    for r in range(4): L.append(V(f"v_fma_f32 v{Dn+r}, v{Dn+r}, v{Wd+r}, v{Dn+r}"))
    for r in range(4): L.append(It("e", f"v_rcp_f32 v{Dn+r}, v{Dn+r}"))
    for r in range(4): L.append(V(f"v_fma_f32 v{U+r}, v{U+r}, v{Dn+r}, -v{Dn+r}"))
    L.append(V(f"v_cvt_pk_bf16_f32 v{OUT}, v{U}, v{U+1}"))
    L.append(V(f"v_cvt_pk_bf16_f32 v{OUT+1}, v{U+2}, v{U+3}"))
    return L
def epi3(m, P):
    pairset = (m // 2) % 2
    B = V_T + 20 + 4 * pairset
    mm = m - 1
    if mm < 4: vo, so = V_O, mm * 2048
    elif mm < 14: vo, so = V_O + 1, (mm - 4) * 2048
    else: vo, so = V_O + 2, (mm - 4) * 2048
    return (S(f"s_mov_b32 s{S_SO}, {so}"),
            [V(f"v_permlane16_swap_b32 v{B}, v{B+2}"), V(f"v_permlane16_swap_b32 v{B+1}, v{B+3}")],
            It("m", f"buffer_store_dwordx4 v[{B}:{B+3}], v{vo}, s[{S_O}:{S_O+3}], s{S_SO} offen {P.stflags}".rstrip()))

def cost(it): return {"e": 8, "v": 4, "s": 0, "d": 4, "m": 8}[it.kind]

def merge2(a, b):
    ta = sum(map(cost, a)) or 1; tb = sum(map(cost, b)) or 1
    out = []; ia = ib = 0; ca = cb = 0
    while ia < len(a) or ib < len(b):
        if ib >= len(b) or (ia < len(a) and ca / ta <= cb / tb):
            out.append(a[ia]); ca += cost(a[ia]); ia += 1
        else:
            out.append(b[ib]); cb += cost(b[ib]); ib += 1
    return out

def build_final(P):
    h = P.h
    mfl = []; iters = []
    for tau in range(16):
        start = len(mfl)
        mfl += chain(1, tau, rev=P.rev)
        if h + tau <= 15: mfl += chain(0, h + tau, rev=P.rev)
        iters.append((start, len(mfl)))
    sch = Sched(mfl, "final")
    jit = {}
    for idx in range(5, 20):
        jit.setdefault(max(0, idx - 4 - P.jit), []).append(xread(1, idx))
    stores = {}
    for tau in range(16):
        s0, s1 = iters[tau]
        a_ = epi1(tau - 1) if tau >= 1 else []
        b_ = []
        if P.pipe:
            if tau >= 2: b_ = epi2(tau - 2, P)
        else:
            if tau >= 1: a_ = a_ + epi2(tau - 1, P)
        ops = merge2(a_, b_) if b_ else a_
        mdone = (tau - 2) if P.pipe else (tau - 1)
        pend = stores.pop(tau, None)
        nm = s1 - s0
        pre = []
        reserved = {}
        for q, it in enumerate(jit.get(tau, [])):
            reserved[s0 + 1 + 2 * q] = it
        tot = sum(map(cost, ops)) or 1
        if pend:
            so, sw, st = pend
            sch.g[s0] = sch.g[s0] + [so] + sw
            sch.g[s0 + 1] = sch.g[s0 + 1] + [st]
        avail = [k for k in range(s0, s1) if not any(x.kind == "m" for x in sch.g[k])]
        if pend: avail = [k for k in avail if k != s0]
        accum = 0
        for it in ops:
            k = avail[min(len(avail) - 1, accum * len(avail) // tot)]
            sch.g[k] = sch.g[k] + [it]
            accum += cost(it)
        for k, it in reserved.items():
            while any(x.kind == "m" for x in sch.g[k]): k += 1
            sch.g[k] = [it] + sch.g[k]
        if mdone >= 0 and mdone % 2 == 1: stores[tau + 1] = epi3(mdone, P)
    if P.h <= 15: pass
    tail = []
    if P.pipe:
        tail += merge2(epi1(15), epi2(14, P)) + epi2(15, P)
    else:
        tail += epi1(15) + epi2(15, P)
    pend = stores.pop(16, None)
    return sch, pend, tail

def gen(P):
    a = Asm()
    E = Emitter(a, P.verbose)
    a.raw(header(256, 256, LDS))
    a("s_cmp_ge_u32 s2, 256")
    a("s_cbranch_scc1 L_end")
    a(f"s_load_dwordx4 s[{S_T}:{S_T+3}], s[0:1], 0")
    a(f"s_load_dwordx2 s[{S_T+4}:{S_T+5}], s[0:1], 16")
    if P.diag:
        a(f"s_load_dwordx2 s[{S_WSP}:{S_WSP+1}], s[0:1], 32")
        a(f"s_memrealtime s[{S_RT}:{S_RT+1}]")
    t = S_T + 6
    a(f"s_and_b32 s{t}, s2, 7")
    a(f"s_lshr_b32 s{t+1}, s2, 3")
    a(f"s_lshr_b32 s{t+2}, s{t}, 1")
    a(f"s_lshl_b32 s{t+2}, s{t+2}, 3")
    if P.map == 0:
        a(f"s_lshr_b32 s{t+3}, s{t+1}, 2")
        a(f"s_and_b32 s{t+1}, s{t+1}, 3")
    else:
        a(f"s_and_b32 s{t+3}, s{t+1}, 7")
        a(f"s_lshr_b32 s{t+1}, s{t+1}, 3")
    a(f"s_add_u32 s{t+2}, s{t+2}, s{t+3}")
    a(f"s_and_b32 s{t}, s{t}, 1")
    a(f"s_lshl_b32 s{t}, s{t}, 2")
    if P.nxor: a(f"s_xor_b32 s{t+1}, s{t+1}, {P.nxor}")
    a(f"s_add_u32 s{t}, s{t}, s{t+1}")
    a(f"s_lshr_b32 s{t+1}, s{t+2}, 4")
    a(f"s_lshr_b32 s{t+3}, s{t+2}, 1")
    a(f"s_and_b32 s{t+3}, s{t+3}, 7")
    a(f"s_and_b32 s{t+2}, s{t+2}, 1")
    a(f"s_mul_i32 s{t+3}, s{t+3}, 500")
    a(f"s_add_u32 s{t+3}, s{t+3}, s{t+2}")
    a(f"s_sub_u32 s{t+3}, s{t+3}, 8")
    a(f"s_lshl_b32 s{t+3}, s{t+3}, 10")
    a(f"s_mul_i32 s{t+1}, s{t+1}, 4096000")
    a(f"s_lshl_b32 s{t}, s{t}, 7")
    a(f"v_and_b32 v{V_LANE}, 63, v0")
    a(f"v_lshrrev_b32 v{V_T}, 6, v0")
    a("s_nop 0")
    a(f"v_readfirstlane_b32 s{S_WAVE}, v{V_T}")
    T = V_T
    a(f"v_lshrrev_b32 v{T}, 2, v{V_LANE}")
    a(f"v_lshrrev_b32 v{T+1}, 3, v{V_LANE}")
    a(f"v_and_b32 v{T+1}, 2, v{T+1}")
    a(f"v_and_b32 v{T+2}, 3, v{V_LANE}")
    a(f"v_xor_b32 v{T+1}, v{T+1}, v{T+2}")
    a(f"v_lshlrev_b32 v{T+1}, 4, v{T+1}")
    a(f"v_lshlrev_b32 v{T}, 15, v{T}")
    a(f"v_add_u32 v{T}, v{T}, v{T+1}")
    a(f"s_lshl_b32 s{t+4}, s{S_WAVE}, 13")
    a(f"s_add_u32 s{t+4}, s{t+4}, s{t+3}")
    a(f"v_add_u32 v{V_XO}, s{t+4}, v{T}")
    for k in range(1, 4):
        a(f"v_add_u32 v{V_XO+k}, {k*1024}, v{V_XO}")
    a(f"v_lshrrev_b32 v{T}, 4, v{V_LANE}")
    a(f"s_and_b32 s{t+4}, s{S_WAVE}, 1")
    a(f"s_lshl_b32 s{t+4}, s{t+4}, 2")
    a(f"v_or_b32 v{T+1}, s{t+4}, v{T}")
    a(f"v_bfe_u32 v{T+2}, v{V_LANE}, 1, 3")
    a(f"v_xor_b32 v{T+1}, v{T+1}, v{T+2}")
    a(f"v_and_b32 v{T+2}, 3, v{T+1}")
    a(f"v_lshlrev_b32 v{T+2}, 5, v{T+2}")
    a(f"v_lshrrev_b32 v{T+1}, 2, v{T+1}")
    a(f"v_lshlrev_b32 v{T+1}, 10, v{T+1}")
    a(f"v_add_u32 v{T+1}, v{T+1}, v{T+2}")
    a(f"v_and_b32 v{T+2}, 1, v{V_LANE}")
    a(f"v_lshlrev_b32 v{T+2}, 4, v{T+2}")
    a(f"v_add_u32 v{T+1}, v{T+1}, v{T+2}")
    a(f"v_lshlrev_b32 v{T}, 11, v{T}")
    a(f"v_add_u32 v{T+1}, v{T+1}, v{T}")
    a(f"s_lshl_b32 s{t+4}, s{S_WAVE}, 14")
    a(f"s_add_u32 s{t+4}, s{t+4}, s{t}")
    a(f"v_add_u32 v{V_WO}, s{t+4}, v{T+1}")
    for k in range(10):
        a(f"s_mov_b32 s{S_WS + k}, {(k//2)*1048576 + (k%2)*8192 - (k%4)*1024}")
    a(f"s_lshl_b32 s{S_LX}, s{S_WAVE}, 12")
    a(f"s_mul_i32 s{S_LW}, s{S_WAVE}, 10240")
    a(f"s_add_u32 s{S_LW}, s{S_LW}, {WBASE}")
    a(f"s_mov_b32 s{S_XOFF}, 0")
    a(f"s_mov_b32 s{S_LWC}, s{S_LW}")
    a("s_waitcnt lgkmcnt(0)")
    if P.diag: a("s_memrealtime s[84:85]")
    a(f"s_add_u32 s{S_X}, s{S_T}, s{t+1}")
    a(f"s_addc_u32 s{S_X+1}, s{S_T+1}, 0")
    a(f"s_and_b32 s{S_X+1}, s{S_X+1}, 0xffff")
    a(f"s_mov_b32 s{S_X+2}, 4096000")
    a(f"s_mov_b32 s{S_X+3}, 0x20000")
    a(f"s_mov_b32 s{S_W}, s{S_T+2}")
    a(f"s_and_b32 s{S_W+1}, s{S_T+3}, 0xffff")
    a(f"s_mov_b32 s{S_W+2}, 5242880")
    a(f"s_mov_b32 s{S_W+3}, 0x20000")
    order = [xdma(0, k) for k in range(4)] + [wdma(k) for k in range(10)]
    if P.wfirst: order = [wdma(0), wdma(1)] + [xdma(0, k) for k in range(4)] + [wdma(k) for k in range(2, 10)]
    m0 = None
    for it in order:
        if it.m0 != m0: a(it.m0); a("s_nop 0"); m0 = it.m0
        a(it.text)
    a(f"s_add_u32 s{S_XOFF}, s{S_XOFF}, 64")
    for grp in w_advance():
        for s in grp: a(s.text)
    a(f"s_add_u32 s{S_LWC}, s{S_LW}, {WB}")
    P._m0 = None
    if P.diag: a("s_memrealtime s[86:87]")
    a(f"s_add_u32 s{S_O}, s{S_T+4}, s{t+1}")
    a(f"s_addc_u32 s{S_O+1}, s{S_T+5}, 0")
    a(f"s_and_b32 s{S_O+1}, s{S_O+1}, 0xffff")
    a(f"s_mov_b32 s{S_O+2}, 4096000")
    a(f"s_mov_b32 s{S_O+3}, 0x20000")
    a(f"v_lshrrev_b32 v{T}, 4, v{V_LANE}")
    a(f"v_and_b32 v{T+1}, 15, v{V_LANE}")
    a(f"v_lshrrev_b32 v{T+2}, 1, v{T+1}")
    a(f"v_and_b32 v{T+2}, 2, v{T+2}")
    a(f"v_xor_b32 v{T+2}, v{T+2}, v{T}")
    a(f"v_lshlrev_b32 v{T+2}, 4, v{T+2}")
    a(f"v_lshlrev_b32 v{T+3}, 6, v{T+1}")
    a(f"v_add_u32 v{V_XR}, v{T+2}, v{T+3}")
    a(f"v_add_u32 v{V_XR+1}, {XB}, v{V_XR}")
    a(f"v_subrev_u32 v{T+3}, 1, v{T+1}")
    a(f"v_lshrrev_b32 v{T+2}, 1, v{T+3}")
    a(f"v_and_b32 v{T+2}, 2, v{T+2}")
    a(f"v_xor_b32 v{T+2}, v{T+2}, v{T}")
    a(f"v_lshlrev_b32 v{T+2}, 4, v{T+2}")
    a(f"v_lshlrev_b32 v{T+3}, 6, v{T+3}")
    a(f"v_add_u32 v{T+2}, v{T+2}, v{T+3}")
    a(f"v_add_u32 v{V_XS}, {12*1024}, v{T+2}")
    a(f"v_add_u32 v{V_XS+1}, {XB + 12*1024}, v{T+2}")
    a(f"v_lshrrev_b32 v{T+2}, 2, v{T+1}")
    a(f"v_and_b32 v{T+3}, 1, v{T}")
    a(f"v_lshlrev_b32 v{T+3}, 2, v{T+3}")
    a(f"v_or_b32 v{T+3}, v{T+3}, v{T+2}")
    a(f"v_xor_b32 v{T+3}, s{S_WAVE}, v{T+3}")
    a(f"v_lshlrev_b32 v{T+3}, 5, v{T+3}")
    a(f"v_lshlrev_b32 v{T+2}, 8, v{T+2}")
    a(f"v_add_u32 v{T+3}, v{T+3}, v{T+2}")
    a(f"v_mul_u32_u24 v{T+2}, 10240, v{T}")
    a(f"v_add_u32 v{T+3}, v{T+3}, v{T+2}")
    a(f"v_and_b32 v{T+2}, 3, v{T+1}")
    a(f"v_lshlrev_b32 v{T+2}, 3, v{T+2}")
    a(f"v_add_u32 v{T+3}, v{T+3}, v{T+2}")
    a(f"v_add_u32 v{V_WF0}, {WBASE}, v{T+3}")
    a(f"v_mov_b32 v{V_WF}, v{V_WF0}")
    a(f"v_xor_b32 v{V_WG}, 128, v{V_WF0}")
    a(f"v_lshlrev_b32 v{T+2}, 15, v{T+1}")
    a(f"v_and_b32 v{T+3}, 1, v{T}")
    a(f"v_lshlrev_b32 v{T+3}, 11, v{T+3}")
    a(f"v_add_u32 v{T+2}, v{T+2}, v{T+3}")
    a(f"v_lshrrev_b32 v{T+3}, 1, v{T}")
    a(f"v_lshlrev_b32 v{T+3}, 4, v{T+3}")
    a(f"v_add_u32 v{T+2}, v{T+2}, v{T+3}")
    a(f"s_lshl_b32 s{t+4}, s{S_WAVE}, 5")
    a(f"s_add_u32 s{t+4}, s{t+4}, s{t}")
    a(f"s_add_u32 s{t+4}, s{t+4}, s{t+3}")
    a(f"v_add_u32 v{T+2}, s{t+4}, v{T+2}")
    a(f"v_add_u32 v{V_O+1}, 8192, v{T+2}")
    a(f"v_mov_b32 v{T+3}, 0x80000000")
    a(f"v_cmp_eq_u32 vcc, 0, v{T+1}")
    a("s_nop 1")
    a(f"v_cndmask_b32 v{V_O}, v{T+2}, v{T+3}, vcc")
    a(f"v_cmp_eq_u32 vcc, 15, v{T+1}")
    a("s_nop 1")
    a(f"v_cndmask_b32 v{V_O+2}, v{V_O+1}, v{T+3}, vcc")
    a(f"s_mov_b32 s{S_C2}, 0x4038aa3b")
    a(f"s_mov_b32 s{S_C1}, 0xbfb8aa3b")
    a(f"s_mov_b32 s{S_CL}, 0x41f00000")
    if P.diag:
        a(f"v_mov_b32 v{V_ST}, 0")
        a(f"v_mov_b32 v{V_ST+1}, 0")
        a(f"s_mov_b32 m0, 63")
        a(f"v_writelane_b32 v{V_ST+1}, s{S_RT}, m0")
        a("s_memrealtime s[88:89]")
    a("s_waitcnt vmcnt(8)")
    if P.diag: a("s_memrealtime s[90:91]")
    a("s_barrier")
    if P.diag:
        a("s_memrealtime s[92:93]")
        a("s_waitcnt lgkmcnt(0)")
        for k, sr in enumerate([84, 86, 88, 90, 92]):
            a(f"v_writelane_b32 v{V_ST+1}, s{sr}, {32+k}")
    pre = wread(0, 0, 0) + [xread(0, 0)] + wread(0, 0, 1) + [xread(0, idx) for idx in range(1, P.npre)]
    for o in pre: E.op(o)
    a(f"s_mov_b32 s{S_CNT}, 0")
    sch, m0 = build_step0(P)
    diag_open(sch, P); E.run(sch); diag_close(E, P, 0)
    a.label("L_loop")
    st0 = list(E.out)
    sch, m0a = build_step(1, P, "odd"); diag_open(sch, P); E.run(sch); diag_close(E, P, 1)
    sch, m0b = build_step(0, P, "even", m0prev=None); diag_open(sch, P); E.run(sch); diag_close(E, P, 2)
    a(f"s_add_u32 s{S_CNT}, s{S_CNT}, 2")
    a(f"s_cmp_lt_u32 s{S_CNT}, 12")
    a("s_cbranch_scc1 L_loop")
    sch, _ = build_step(1, P, "s13"); diag_open(sch, P); E.run(sch); diag_close(E, P, 1)
    mfl = []
    for m in range(P.h): mfl += chain(0, m, rev=P.rev)
    rl = read_list(1, 5 if P.h <= 15 else 20)
    sch, _ = build_step(0, P, "s14", wd=False, xd=False, vm=0, mfl=mfl, pb=P.pb14 if P.h <= 15 else P.pb, rl=rl, ring=False,
                        rd_end=len(mfl) - 1 - P.rdtail14, late_end=min(P.late_end, (P.pb14 if P.h <= 15 else P.pb) - 3))
    diag_open(sch, P); E.run(sch); diag_close(E, P, 2)
    if P.diag: a(f"s_add_u32 s{S_CNT}, s{S_CNT}, 2")
    sch, pend, tail = build_final(P)
    if P.h > 15:
        for k in sch.g: sch.g[k] = [x for x in sch.g[k] if x.kind != "d"]
    diag_open(sch, P); E.run(sch, canon=False); diag_close(E, P, 1)
    if P.diag:
        a(f"s_memtime s[{S_CLK}:{S_CLK+1}]"); a(f"s_memrealtime s[{S_RT}:{S_RT+1}]")
        a("s_waitcnt lgkmcnt(0)"); a("s_mov_b32 m0, 16")
        a(f"v_writelane_b32 v{V_ST}, s{S_CLK}, m0"); a(f"v_writelane_b32 v{V_ST+1}, s{S_RT}, m0")
    if pend:
        so, sw, st = pend
        E.op(so); E.op("s_nop 0")
        for x in sw: E.op(x)
        E.op(st)
    for x in tail: E.op(x)
    so, sw, st = epi3(15, P)
    E.op(so); E.op("s_nop 0")
    for x in sw: E.op(x)
    E.op(st)
    if P.diag:
        a("s_waitcnt vmcnt(0)")
        a(f"s_memtime s[{S_CLK}:{S_CLK+1}]"); a(f"s_memrealtime s[{S_RT}:{S_RT+1}]")
        a("s_waitcnt lgkmcnt(0)"); a("s_mov_b32 m0, 17")
        a(f"v_writelane_b32 v{V_ST}, s{S_CLK}, m0"); a(f"v_writelane_b32 v{V_ST+1}, s{S_RT}, m0")
        a(f"s_lshl_b32 s{S_T}, s2, 2"); a(f"s_add_u32 s{S_T}, s{S_T}, s{S_WAVE}")
        a(f"s_lshl_b32 s{S_T}, s{S_T}, 9")
        a(f"v_lshlrev_b32 v{V_T}, 3, v{V_LANE}")
        a(f"v_add_u32 v{V_T}, s{S_T}, v{V_T}")
        a(f"global_store_dwordx2 v{V_T}, v[{V_ST}:{V_ST+1}], s[{S_WSP}:{S_WSP+1}]")
    a.label("L_end")
    a("s_endpgm")
    a.raw(footer(496, 256))
    if P.verbose: print(f"fallback waits {E.fallback}, pattern violations {E.viol}, hazard nops {E.nops}", file=sys.stderr)
    return a.text()

def parser():
    ap = argparse.ArgumentParser()
    ap.add_argument("-o", default="k4.s")
    for f in ["diag", "verbose", "wfirst", "rev"]:
        ap.add_argument("--" + f, action="store_true")
    ap.add_argument("--nopipe", dest="pipe", action="store_false")
    ap.add_argument("--stflags", type=str, default="")
    for k, d in dict(pb=80, x0=1, xstride=6, w0=2, wstride=8, rd0=0, rdtail=6, va=40, ring0=30,
                     npre=4, gB=24, rAend=20, rBlen=22, d0=1, d0stride=4, d2=70, d2stride=5, pb0=125, x0stride=4,
                     map=0, nxor=0, h=6, pb14=24, rdtail14=4, jit=2, L=8, late0=1, late_end=34, latewait=5, rdtail0=3).items():
        ap.add_argument("--" + k, type=int, default=d)
    return ap

if __name__ == "__main__":
    P = parser().parse_args()
    open(P.o, "w").write(gen(P))
```

```python
import sys, argparse, re
from gen_common import *

XB = 16384; WB = 40960; WBASE = 2 * XB
LDS = WBASE + 3 * WB
ACC0 = 128
def accb(m, j): return ACC0 + (m * 2 + j) * 4
def acc(m, j): b = accb(m, j); return f"v[{b}:{b+3}]"
def XRb(s, idx): return s * 80 + idx * 4
def XR(s, idx): b = XRb(s, idx); return f"a[{b}:{b+3}]"
def WRb(s, i, j): return 160 + s * 40 + (i * 2 + j) * 4
def WR(s, i, j): b = WRb(s, i, j); return f"a[{b}:{b+3}]"

V_LANE = 1
V_XO = 2
V_WO = 6
V_XR = 8
V_XS = 10
V_WF0 = 12
V_WF = 14
V_WG = 15
V_O = 16
V_ST = 20
V_T = 24
S_X = 4; S_W = 8; S_O = 12
S_WAVE = 16; S_XOFF = 17; S_A = 18; S_CNT = 19
S_WS = 20
S_LX = 30; S_LW = 31; S_LWC = 35
S_C2 = 32; S_C1 = 33; S_CL = 34
S_T = 36
S_WSP = 48
S_CLK = 50; S_RT = 52
S_B = 62
S_SO = 63
S_M0S = 98

ALLOWED = {"", "s", "ss", "sss", "d", "sd", "ds", "dv", "sdv", "sds", "v", "vv", "sv", "svv", "ssv", "e", "se", "m"}

class It:
    def __init__(self, kind, text, rd=None, m0=None):
        self.kind = kind; self.text = text; self.rd = rd; self.m0 = m0
def S(t): return It("s", t)
def V(t): return It("v", t)

def xdma(par, a_):
    off = f" offset:{a_*1024}" if a_ else ""
    return It("m", f"buffer_load_dwordx4 v{V_XO+a_}, s[{S_X}:{S_X+3}], s{S_XOFF} offen{off} lds", m0=f"s_add_u32 m0, s{S_LX}, {par * XB}")
def wdma(k):
    off = f" offset:{(k%4)*1024}" if k % 4 else ""
    return It("m", f"buffer_load_dwordx4 v{V_WO}, s[{S_W}:{S_W+3}], s{S_WS + k} offen{off} lds", m0=f"s_add_u32 m0, s{S_LWC}, {(k//4)*4096}")
def w_advance():
    return [[S(f"s_add_u32 s{S_W}, s{S_W}, 0x10000"), S(f"s_addc_u32 s{S_W+1}, s{S_W+1}, 0")],
            [S(f"s_sub_u32 s{S_W+2}, s{S_W+2}, 0x10000")]]

def xread(par, idx):
    q = idx - 4
    b = XRb(par, idx)
    if q < 0:
        return It("d", f"ds_read_b128 {XR(par, idx)}, v{V_XS+par} offset:{(q+4)*1024}", ('a', b, b + 3))
    return It("d", f"ds_read_b128 {XR(par, idx)}, v{V_XR+par} offset:{q*1024}", ('a', b, b + 3))
def wread(par, i, j):
    b = WRb(par, i, j)
    v = (V_WF if j == 0 else V_WG)
    return [It("d", f"ds_read_b64_tr_b16 a[{b}:{b+1}], v{v} offset:{i*2048}", ('a', b, b + 1)),
            It("d", f"ds_read_b64_tr_b16 a[{b+2}:{b+3}], v{v} offset:{i*2048+1024}", ('a', b + 2, b + 3))]
def read_list(par, nx=20):
    L = []
    for i in range(5):
        L += wread(par, i, 0)
        L.append(xread(par, i))
    for i in range(5):
        L += wread(par, i, 1)
    for idx in range(5, nx):
        L.append(xread(par, idx))
    return L

def mf(par, m, j, i, zero_c=False):
    c = "0" if zero_c else acc(m, j)
    return (f"v_mfma_f32_16x16x32_bf16 {acc(m,j)}, {WR(par,i,j)}, {XR(par,m+i)}, {c}",
            [('a', WRb(par,i,j), WRb(par,i,j)+3), ('a', XRb(par,m+i), XRb(par,m+i)+3)])
def chain(par, m, taps=range(5), rev=False):
    L = []
    for j in range(2):
        t = list(taps)
        if rev and j == 1: t = t[::-1]
        L += [mf(par, m, j, i) for i in t]
    return L
def mfma_list(par, P):
    L = []
    for m in range(16): L += chain(par, m, rev=P.rev)
    return L

class Sched:
    def __init__(self, mfl, name=""):
        self.mf = mfl; self.n = len(mfl); self.g = {k: [] for k in range(-1, self.n)}; self.name = name
    def pat(self, items): return "".join(i.kind for i in items)
    def canon(self, items):
        d = [i for i in items if i.kind == "d"]
        if not d:
            s = [i for i in items if i.kind == "s"]; r = [i for i in items if i.kind != "s"]
            return s + r
        s = [i for i in items if i.kind == "s"]; r = [i for i in items if i.kind not in "sd"]
        return s[:1] + d + s[1:] + r
    def fits(self, k, group):
        if k == -1: return True
        return self.pat(self.canon(self.g[k] + group)) in ALLOWED
    def at(self, k, group, force=False):
        if isinstance(group, It): group = [group]
        kk = k
        if not force:
            while kk < self.n - 1 and not self.fits(kk, group): kk += 1
            if not self.fits(kk, group): kk = k
        self.g[kk] = self.g[kk] + group
        return kk
    def dma(self, k, it, prev_m0):
        kk = k
        while True:
            ok = self.pat(self.g[kk]) == "" and kk < self.n
            if ok and it.m0 != prev_m0:
                ok = kk - 1 >= -1 and self.fits(kk - 1, [S(it.m0)]) and not any(x.kind == "m" for x in self.g[kk - 1])
            if ok: break
            kk += 1
            assert kk < self.n, ("no room for dma", self.name, k)
        if it.m0 != prev_m0: self.g[kk - 1] = self.g[kk - 1] + [S(it.m0)]
        self.g[kk] = [it]
        return kk
    def spread(self, items, g0, g1):
        last = g0 - 1
        n = len(items)
        for q, it in enumerate(items):
            want = max(g0 + (q * (g1 - g0 + 1)) // n, last + 1)
            kk = want
            while kk < self.n and not self.fits(kk, [it]): kk += 1
            if kk >= self.n:
                kk = min(want, self.n - 1)
            self.g[kk] = self.g[kk] + [it]
            last = kk
        return last

def vregs(txt):
    r = set()
    for m in re.finditer(r"(?<![a-z_])v\[(\d+):(\d+)\]", txt): r.update(range(int(m.group(1)), int(m.group(2)) + 1))
    for m in re.finditer(r"(?<![a-z_\[])v(\d+)", txt): r.add(int(m.group(1)))
    return r

class Emitter:
    def __init__(self, a, verbose=False):
        self.a = a; self.out = []; self.verbose = verbose; self.fallback = 0; self.viol = 0
        self.count = 0; self.mfw = {}; self.nops = 0
    def tick(self, txt):
        m = re.match(r"s_nop (\d+)", txt)
        self.count += (int(m.group(1)) + 1) if m else 1
    def mfma(self, txt):
        self.a(txt); self.tick(txt)
        m = re.match(r"v_mfma\S+ v\[(\d+):(\d+)\]", txt)
        for r in range(int(m.group(1)), int(m.group(2)) + 1): self.mfw[r] = self.count
    def valu_hazard(self, txt):
        need = 0
        for r in vregs(txt):
            if r in self.mfw:
                dist = self.count - self.mfw[r]
                need = max(need, 8 - dist)
        if need > 0:
            self.nops += 1
            if self.verbose: print(f"  hazard nop {need} before {txt}", file=sys.stderr)
            t = f"s_nop {need - 1}"
            self.a(t); self.tick(t)
    def op(self, o):
        if isinstance(o, It):
            if o.kind in "vem": self.valu_hazard(o.text)
            self.a(o.text); self.tick(o.text)
            if o.rd: self.out.append(o.rd)
            txt = o.text
        else:
            self.a(o); self.tick(o); txt = o
        if txt.startswith("s_waitcnt"):
            m = re.search(r"lgkmcnt\((\d+)\)", txt)
            if m:
                n = int(m.group(1))
                self.out = self.out[len(self.out) - n:] if n < len(self.out) else self.out
                if n == 0: self.out = []
    def need(self, regs, where=""):
        last = -1
        for k, (f, lo, hi) in enumerate(self.out):
            for (f2, lo2, hi2) in regs:
                if f == f2 and lo <= hi2 and lo2 <= hi: last = k
        if last >= 0:
            n = len(self.out) - 1 - last
            self.fallback += 1
            if self.verbose: print(f"  fallback wait lgkmcnt({n}) at {where}", file=sys.stderr)
            self.op(f"s_waitcnt lgkmcnt({min(n, 15)})")
    def run(self, sch, canon=True):
        for g, items in sch.g.items():
            for it in items:
                if it.rd:
                    f, lo, hi = it.rd
                    for k in range(0, g + 1):
                        for (f2, lo2, hi2) in sch.mf[k][1]:
                            assert not (f == f2 and lo <= hi2 and lo2 <= hi), f"read after use: {sch.name} gap {g} mfma {k}: {it.text}"
        for it in sch.g[-1]: self.op(it)
        for k, (txt, regs) in enumerate(sch.mf):
            self.need(regs, f"{sch.name}:{k} (late)")
            self.mfma(txt)
            if k + 1 < sch.n: self.need(sch.mf[k + 1][1], f"{sch.name}:{k}")
            items = sch.canon(sch.g[k]) if canon else sch.g[k]
            p = sch.pat(items)
            if canon and p not in ALLOWED:
                self.viol += 1
                if self.verbose: print(f"  pattern {p} at {sch.name}:{k}", file=sys.stderr)
            for it in items: self.op(it)

def diag_open(sch, P):
    if P.diag:
        sch.g[-1] = [S(f"s_memtime s[{S_CLK}:{S_CLK+1}]"), S(f"s_memrealtime s[{S_RT}:{S_RT+1}]")] + sch.g[-1]
def diag_close(E, P, laneoff):
    if not P.diag: return
    a = E.a
    E.op("s_waitcnt lgkmcnt(0)")
    a(f"s_mov_b32 s{S_M0S}, m0")
    a(f"s_add_u32 m0, s{S_CNT}, {laneoff}")
    a(f"v_writelane_b32 v{V_ST}, s{S_CLK}, m0"); a(f"v_writelane_b32 v{V_ST+1}, s{S_RT}, m0")
    a(f"s_mov_b32 m0, s{S_M0S}")

def ring_update(sch, g0):
    k = sch.at(g0, [S(f"s_mov_b32 s{S_A}, s{S_B}"), S(f"s_add_u32 s{S_B}, s{S_B}, {WB}")])
    k = sch.at(k + 1, [S(f"s_cmp_eq_u32 s{S_B}, {3*WB}"), S(f"s_cselect_b32 s{S_B}, 0, s{S_B}")])
    k = sch.at(k + 1, [S(f"s_add_u32 s{S_LWC}, s{S_LW}, s{S_B}")])
    return k

def build_step(par, P, name, wd=True, xd=True, vm=10, barrier=True, reads=True, mfl=None, pb=None, rd_end=None, rl=None,
               m0prev=None, ring=True, late=True, late_end=None):
    mfl = mfl if mfl is not None else mfma_list(par, P)
    sch = Sched(mfl, name)
    pb = P.pb if pb is None else pb
    n = sch.n
    m0 = m0prev
    last = 0
    if wd:
        for k in range(10):
            it = wdma(k)
            last = sch.dma(P.w0 + P.wstride * k, it, m0); m0 = it.m0
        assert last < pb - 1, (last, pb)
        adv = w_advance()
        kk = sch.at(last + 1, adv[0]); sch.at(kk, adv[1])
    if late:
        le = P.late_end if late_end is None else late_end
        kk = sch.spread([xread(par, idx) for idx in range(P.L, 20)], P.late0, le)
        sch.at(max(kk + P.latewait, 0), S("s_waitcnt lgkmcnt(0)"))
    if reads:
        kk = sch.at(min(P.va, pb - 6), V(f"v_add_u32 v{V_WF}, s{S_A}, v{V_WF0}"))
        assert kk + 2 < pb
        sch.at(kk + 1, V(f"v_xor_b32 v{V_WG}, 128, v{V_WF}"))
    if barrier:
        sch.g[pb - 1] = sch.g[pb - 1] + [S(f"s_waitcnt vmcnt({vm}) lgkmcnt(0)"), S("s_barrier")]
    if xd:
        for k in range(4):
            it = xdma(par, k)
            last = sch.dma(pb + P.x0 + P.xstride * k, it, m0); m0 = it.m0
        sch.at(last + 1, S(f"s_add_u32 s{S_XOFF}, s{S_XOFF}, 64"))
    if ring: ring_update(sch, pb + P.ring0)
    if reads:
        rl = rl if rl is not None else read_list(1 - par, P.L)
        sch.spread(rl, pb + P.rd0, (n - 1 - P.rdtail) if rd_end is None else rd_end)
        sch.g[n - 1] = sch.g[n - 1] + [S("s_waitcnt lgkmcnt(0)")]
    return sch, m0

def build_step0(P):
    mfl = [mf(0, m, j, 0, zero_c=True) for m in range(16) for j in range(2)]
    mfl += [mf(0, m, j, 1) for m in range(16) for j in range(2)]
    for m in range(16): mfl += chain(0, m, taps=[2, 3, 4])
    sch = Sched(mfl, "step0")
    m0 = P._m0
    ra = [xread(0, idx) for idx in range(P.npre, 20)]
    st1 = [xdma(1, k) for k in range(4)] + [wdma(k) for k in range(10)]
    gB = P.gB
    pos = []
    g = P.d0
    nB = 0
    for q, it in enumerate(st1):
        g = sch.dma(g, it, m0); m0 = it.m0
        pos.append(g)
        if g < gB: nB += 1
        if q == 3: sch.at(g + 1, S(f"s_add_u32 s{S_XOFF}, s{S_XOFF}, 64"))
        g += P.d0stride
    last1 = pos[-1]
    sch.g[gB] = sch.g[gB] + [S(f"s_waitcnt vmcnt({nB})"), S("s_barrier")]
    assert not any(x.kind == "m" for x in sch.g[gB])
    sch.spread(ra, 0, P.rAend)
    rb = wread(0, 1, 0) + wread(0, 1, 1)
    for j in range(2):
        for i in (2, 3, 4): rb += wread(0, i, j)
    lastb = sch.spread(rb, gB + 1, gB + P.rBlen)
    sch.at(lastb + 6, S("s_waitcnt lgkmcnt(0)"))
    adv = w_advance()
    kk = sch.at(last1 + 1, adv[0]); kk = sch.at(kk, adv[1])
    kk = sch.at(kk, S(f"s_add_u32 s{S_LWC}, s{S_LW}, {2*WB}"))
    g = max(kk + 2, P.d2)
    pb = P.pb0
    n2 = 0; m0 = None
    w2 = [wdma(k) for k in range(10)]
    rest = []
    for it in w2:
        if g < pb - 2:
            g = sch.dma(g, it, m0); m0 = it.m0; n2 += 1
            g += P.d2stride
        else: rest.append(it)
    kk = sch.at(lastb + 2, V(f"v_add_u32 v{V_WF}, {WB}, v{V_WF0}"))
    kk = sch.at(kk + 1, V(f"v_xor_b32 v{V_WG}, 128, v{V_WF}"))
    assert kk < pb - 1
    sch.g[pb - 1] = sch.g[pb - 1] + [S(f"s_waitcnt vmcnt({n2}) lgkmcnt(0)"), S("s_barrier")]
    g = pb + 1
    for k in range(4):
        it = xdma(0, k)
        g = sch.dma(g, it, m0); m0 = it.m0
        g += P.x0stride
    sch.at(g - P.x0stride + 1, S(f"s_add_u32 s{S_XOFF}, s{S_XOFF}, 64"))
    for it in rest:
        g = sch.dma(g, it, m0); m0 = it.m0
        g += P.x0stride
    adv = w_advance()
    kk = sch.at(g, adv[0]); kk = sch.at(kk, adv[1])
    kk = sch.at(kk, [S(f"s_mov_b32 s{S_A}, {2*WB}"), S(f"s_mov_b32 s{S_B}, 0")])
    kk = sch.at(kk, S(f"s_mov_b32 s{S_LWC}, s{S_LW}"))
    sch.spread(read_list(1, P.L), pb, sch.n - 1 - P.rdtail0)
    sch.g[sch.n - 1] = sch.g[sch.n - 1] + [S("s_waitcnt lgkmcnt(0)")]
    return sch, m0

def epi1(m):
    f = accb(m, 0); g = accb(m, 1)
    o = V_T + 8 * (m % 2); U = o; Wd = o + 4
    L = []
    for r in range(4): L.append(V(f"v_mul_f32 v{U+r}, s{S_C2}, v{f+r}"))
    for r in range(4): L.append(V(f"v_mul_f32 v{Wd+r}, s{S_C1}, v{g+r}"))
    for r in range(4): L.append(V(f"v_min_f32 v{U+r}, s{S_CL}, v{U+r}"))
    for r in range(4): L.append(It("e", f"v_exp_f32 v{Wd+r}, v{Wd+r}"))
    for r in range(4): L.append(It("e", f"v_exp_f32 v{U+r}, v{U+r}"))
    return L
def epi2(m, P):
    o = V_T + 8 * (m % 2); U = o; Wd = o + 4
    Dn = V_T + 16
    pairset = (m // 2) % 2
    OUT = V_T + 20 + 4 * pairset + 2 * (m % 2)
    L = []
    for r in range(4): L.append(V(f"v_add_f32 v{Dn+r}, 1.0, v{U+r}"))
    for r in range(4): L.append(V(f"v_fma_f32 v{Dn+r}, v{Dn+r}, v{Wd+r}, v{Dn+r}"))
    for r in range(4): L.append(It("e", f"v_rcp_f32 v{Dn+r}, v{Dn+r}"))
    for r in range(4): L.append(V(f"v_fma_f32 v{U+r}, v{U+r}, v{Dn+r}, -v{Dn+r}"))
    L.append(V(f"v_cvt_pk_bf16_f32 v{OUT}, v{U}, v{U+1}"))
    L.append(V(f"v_cvt_pk_bf16_f32 v{OUT+1}, v{U+2}, v{U+3}"))
    return L
def epi3(m, P):
    pairset = (m // 2) % 2
    B = V_T + 20 + 4 * pairset
    mm = m - 1
    if mm < 4: vo, so = V_O, mm * 2048
    elif mm < 14: vo, so = V_O + 1, (mm - 4) * 2048
    else: vo, so = V_O + 2, (mm - 4) * 2048
    return (S(f"s_mov_b32 s{S_SO}, {so}"),
            [V(f"v_permlane16_swap_b32 v{B}, v{B+2}"), V(f"v_permlane16_swap_b32 v{B+1}, v{B+3}")],
            It("m", f"buffer_store_dwordx4 v[{B}:{B+3}], v{vo}, s[{S_O}:{S_O+3}], s{S_SO} offen {P.stflags}".rstrip()))

def cost(it): return {"e": 8, "v": 4, "s": 0, "d": 4, "m": 8}[it.kind]

def merge2(a, b):
    ta = sum(map(cost, a)) or 1; tb = sum(map(cost, b)) or 1
    out = []; ia = ib = 0; ca = cb = 0
    while ia < len(a) or ib < len(b):
        if ib >= len(b) or (ia < len(a) and ca / ta <= cb / tb):
            out.append(a[ia]); ca += cost(a[ia]); ia += 1
        else:
            out.append(b[ib]); cb += cost(b[ib]); ib += 1
    return out

def build_final(P):
    h = P.h
    mfl = []; iters = []
    for tau in range(16):
        start = len(mfl)
        mfl += chain(1, tau, rev=P.rev)
        if h + tau <= 15: mfl += chain(0, h + tau, rev=P.rev)
        iters.append((start, len(mfl)))
    sch = Sched(mfl, "final")
    jit = {}
    for idx in range(5, 20):
        jit.setdefault(max(0, idx - 4 - P.jit), []).append(xread(1, idx))
    stores = {}
    for tau in range(16):
        s0, s1 = iters[tau]
        a_ = epi1(tau - 1) if tau >= 1 else []
        b_ = []
        if P.pipe:
            if tau >= 2: b_ = epi2(tau - 2, P)
        else:
            if tau >= 1: a_ = a_ + epi2(tau - 1, P)
        ops = merge2(a_, b_) if b_ else a_
        mdone = (tau - 2) if P.pipe else (tau - 1)
        pend = stores.pop(tau, None)
        nm = s1 - s0
        pre = []
        reserved = {}
        for q, it in enumerate(jit.get(tau, [])):
            reserved[s0 + 1 + 2 * q] = it
        tot = sum(map(cost, ops)) or 1
        if pend:
            so, sw, st = pend
            sch.g[s0] = sch.g[s0] + [so] + sw
            sch.g[s0 + 1] = sch.g[s0 + 1] + [st]
        avail = [k for k in range(s0, s1) if not any(x.kind == "m" for x in sch.g[k])]
        if pend: avail = [k for k in avail if k != s0]
        accum = 0
        for it in ops:
            k = avail[min(len(avail) - 1, accum * len(avail) // tot)]
            sch.g[k] = sch.g[k] + [it]
            accum += cost(it)
        for k, it in reserved.items():
            while any(x.kind == "m" for x in sch.g[k]): k += 1
            sch.g[k] = [it] + sch.g[k]
        if mdone >= 0 and mdone % 2 == 1: stores[tau + 1] = epi3(mdone, P)
    if P.h <= 15: pass
    tail = []
    if P.pipe:
        tail += merge2(epi1(15), epi2(14, P)) + epi2(15, P)
    else:
        tail += epi1(15) + epi2(15, P)
    pend = stores.pop(16, None)
    return sch, pend, tail

def gen(P):
    a = Asm()
    E = Emitter(a, P.verbose)
    a.raw(header(256, 256, LDS))
    a("s_cmp_ge_u32 s2, 256")
    a("s_cbranch_scc1 L_end")
    a(f"s_load_dwordx4 s[{S_T}:{S_T+3}], s[0:1], 0")
    a(f"s_load_dwordx2 s[{S_T+4}:{S_T+5}], s[0:1], 16")
    if P.diag:
        a(f"s_load_dwordx2 s[{S_WSP}:{S_WSP+1}], s[0:1], 32")
        a(f"s_memrealtime s[{S_RT}:{S_RT+1}]")
    if P.enc >= 0:
        a("s_memrealtime s[90:91]")
    t = S_T + 6
    a(f"s_and_b32 s{t}, s2, 7")
    a(f"s_lshr_b32 s{t+1}, s2, 3")
    a(f"s_lshr_b32 s{t+2}, s{t}, 1")
    a(f"s_lshl_b32 s{t+2}, s{t+2}, 3")
    if P.map == 0:
        a(f"s_lshr_b32 s{t+3}, s{t+1}, 2")
        a(f"s_and_b32 s{t+1}, s{t+1}, 3")
    else:
        a(f"s_and_b32 s{t+3}, s{t+1}, 7")
        a(f"s_lshr_b32 s{t+1}, s{t+1}, 3")
    a(f"s_add_u32 s{t+2}, s{t+2}, s{t+3}")
    a(f"s_and_b32 s{t}, s{t}, 1")
    a(f"s_lshl_b32 s{t}, s{t}, 2")
    if P.nxor: a(f"s_xor_b32 s{t+1}, s{t+1}, {P.nxor}")
    a(f"s_add_u32 s{t}, s{t}, s{t+1}")
    a(f"s_lshr_b32 s{t+1}, s{t+2}, 4")
    a(f"s_lshr_b32 s{t+3}, s{t+2}, 1")
    a(f"s_and_b32 s{t+3}, s{t+3}, 7")
    a(f"s_and_b32 s{t+2}, s{t+2}, 1")
    a(f"s_mul_i32 s{t+3}, s{t+3}, 500")
    a(f"s_add_u32 s{t+3}, s{t+3}, s{t+2}")
    a(f"s_sub_u32 s{t+3}, s{t+3}, 8")
    a(f"s_lshl_b32 s{t+3}, s{t+3}, 10")
    a(f"s_mul_i32 s{t+1}, s{t+1}, 4096000")
    a(f"s_lshl_b32 s{t}, s{t}, 7")
    a(f"v_and_b32 v{V_LANE}, 63, v0")
    a(f"v_lshrrev_b32 v{V_T}, 6, v0")
    a("s_nop 0")
    a(f"v_readfirstlane_b32 s{S_WAVE}, v{V_T}")
    T = V_T
    a(f"v_lshrrev_b32 v{T}, 2, v{V_LANE}")
    a(f"v_lshrrev_b32 v{T+1}, 3, v{V_LANE}")
    a(f"v_and_b32 v{T+1}, 2, v{T+1}")
    a(f"v_and_b32 v{T+2}, 3, v{V_LANE}")
    a(f"v_xor_b32 v{T+1}, v{T+1}, v{T+2}")
    a(f"v_lshlrev_b32 v{T+1}, 4, v{T+1}")
    a(f"v_lshlrev_b32 v{T}, 15, v{T}")
    a(f"v_add_u32 v{T}, v{T}, v{T+1}")
    a(f"s_lshl_b32 s{t+4}, s{S_WAVE}, 13")
    a(f"s_add_u32 s{t+4}, s{t+4}, s{t+3}")
    a(f"v_add_u32 v{V_XO}, s{t+4}, v{T}")
    for k in range(1, 4):
        a(f"v_add_u32 v{V_XO+k}, {k*1024}, v{V_XO}")
    a(f"v_lshrrev_b32 v{T}, 4, v{V_LANE}")
    a(f"s_and_b32 s{t+4}, s{S_WAVE}, 1")
    a(f"s_lshl_b32 s{t+4}, s{t+4}, 2")
    a(f"v_or_b32 v{T+1}, s{t+4}, v{T}")
    a(f"v_bfe_u32 v{T+2}, v{V_LANE}, 1, 3")
    a(f"v_xor_b32 v{T+1}, v{T+1}, v{T+2}")
    a(f"v_and_b32 v{T+2}, 3, v{T+1}")
    a(f"v_lshlrev_b32 v{T+2}, 5, v{T+2}")
    a(f"v_lshrrev_b32 v{T+1}, 2, v{T+1}")
    a(f"v_lshlrev_b32 v{T+1}, 10, v{T+1}")
    a(f"v_add_u32 v{T+1}, v{T+1}, v{T+2}")
    a(f"v_and_b32 v{T+2}, 1, v{V_LANE}")
    a(f"v_lshlrev_b32 v{T+2}, 4, v{T+2}")
    a(f"v_add_u32 v{T+1}, v{T+1}, v{T+2}")
    a(f"v_lshlrev_b32 v{T}, 11, v{T}")
    a(f"v_add_u32 v{T+1}, v{T+1}, v{T}")
    a(f"s_lshl_b32 s{t+4}, s{S_WAVE}, 14")
    a(f"s_add_u32 s{t+4}, s{t+4}, s{t}")
    a(f"v_add_u32 v{V_WO}, s{t+4}, v{T+1}")
    for k in range(10):
        a(f"s_mov_b32 s{S_WS + k}, {(k//2)*1048576 + (k%2)*8192 - (k%4)*1024}")
    a(f"s_lshl_b32 s{S_LX}, s{S_WAVE}, 12")
    a(f"s_mul_i32 s{S_LW}, s{S_WAVE}, 10240")
    a(f"s_add_u32 s{S_LW}, s{S_LW}, {WBASE}")
    a(f"s_mov_b32 s{S_XOFF}, 0")
    a(f"s_mov_b32 s{S_LWC}, s{S_LW}")
    a("s_waitcnt lgkmcnt(0)")
    if P.diag: a("s_memrealtime s[84:85]")
    a(f"s_add_u32 s{S_X}, s{S_T}, s{t+1}")
    a(f"s_addc_u32 s{S_X+1}, s{S_T+1}, 0")
    a(f"s_and_b32 s{S_X+1}, s{S_X+1}, 0xffff")
    a(f"s_mov_b32 s{S_X+2}, 4096000")
    a(f"s_mov_b32 s{S_X+3}, 0x20000")
    a(f"s_mov_b32 s{S_W}, s{S_T+2}")
    a(f"s_and_b32 s{S_W+1}, s{S_T+3}, 0xffff")
    a(f"s_mov_b32 s{S_W+2}, 5242880")
    a(f"s_mov_b32 s{S_W+3}, 0x20000")
    order = [xdma(0, k) for k in range(4)] + [wdma(k) for k in range(10)]
    if P.wfirst: order = [wdma(0), wdma(1)] + [xdma(0, k) for k in range(4)] + [wdma(k) for k in range(2, 10)]
    m0 = None
    for it in order:
        if it.m0 != m0: a(it.m0); a("s_nop 0"); m0 = it.m0
        a(it.text)
    a(f"s_add_u32 s{S_XOFF}, s{S_XOFF}, 64")
    for grp in w_advance():
        for s in grp: a(s.text)
    a(f"s_add_u32 s{S_LWC}, s{S_LW}, {WB}")
    P._m0 = None
    if P.diag: a("s_memrealtime s[86:87]")
    a(f"s_add_u32 s{S_O}, s{S_T+4}, s{t+1}")
    a(f"s_addc_u32 s{S_O+1}, s{S_T+5}, 0")
    a(f"s_and_b32 s{S_O+1}, s{S_O+1}, 0xffff")
    a(f"s_mov_b32 s{S_O+2}, 4096000")
    a(f"s_mov_b32 s{S_O+3}, 0x20000")
    a(f"v_lshrrev_b32 v{T}, 4, v{V_LANE}")
    a(f"v_and_b32 v{T+1}, 15, v{V_LANE}")
    a(f"v_lshrrev_b32 v{T+2}, 1, v{T+1}")
    a(f"v_and_b32 v{T+2}, 2, v{T+2}")
    a(f"v_xor_b32 v{T+2}, v{T+2}, v{T}")
    a(f"v_lshlrev_b32 v{T+2}, 4, v{T+2}")
    a(f"v_lshlrev_b32 v{T+3}, 6, v{T+1}")
    a(f"v_add_u32 v{V_XR}, v{T+2}, v{T+3}")
    a(f"v_add_u32 v{V_XR+1}, {XB}, v{V_XR}")
    a(f"v_subrev_u32 v{T+3}, 1, v{T+1}")
    a(f"v_lshrrev_b32 v{T+2}, 1, v{T+3}")
    a(f"v_and_b32 v{T+2}, 2, v{T+2}")
    a(f"v_xor_b32 v{T+2}, v{T+2}, v{T}")
    a(f"v_lshlrev_b32 v{T+2}, 4, v{T+2}")
    a(f"v_lshlrev_b32 v{T+3}, 6, v{T+3}")
    a(f"v_add_u32 v{T+2}, v{T+2}, v{T+3}")
    a(f"v_add_u32 v{V_XS}, {12*1024}, v{T+2}")
    a(f"v_add_u32 v{V_XS+1}, {XB + 12*1024}, v{T+2}")
    a(f"v_lshrrev_b32 v{T+2}, 2, v{T+1}")
    a(f"v_and_b32 v{T+3}, 1, v{T}")
    a(f"v_lshlrev_b32 v{T+3}, 2, v{T+3}")
    a(f"v_or_b32 v{T+3}, v{T+3}, v{T+2}")
    a(f"v_xor_b32 v{T+3}, s{S_WAVE}, v{T+3}")
    a(f"v_lshlrev_b32 v{T+3}, 5, v{T+3}")
    a(f"v_lshlrev_b32 v{T+2}, 8, v{T+2}")
    a(f"v_add_u32 v{T+3}, v{T+3}, v{T+2}")
    a(f"v_mul_u32_u24 v{T+2}, 10240, v{T}")
    a(f"v_add_u32 v{T+3}, v{T+3}, v{T+2}")
    a(f"v_and_b32 v{T+2}, 3, v{T+1}")
    a(f"v_lshlrev_b32 v{T+2}, 3, v{T+2}")
    a(f"v_add_u32 v{T+3}, v{T+3}, v{T+2}")
    a(f"v_add_u32 v{V_WF0}, {WBASE}, v{T+3}")
    a(f"v_mov_b32 v{V_WF}, v{V_WF0}")
    a(f"v_xor_b32 v{V_WG}, 128, v{V_WF0}")
    a(f"v_lshlrev_b32 v{T+2}, 15, v{T+1}")
    a(f"v_and_b32 v{T+3}, 1, v{T}")
    a(f"v_lshlrev_b32 v{T+3}, 11, v{T+3}")
    a(f"v_add_u32 v{T+2}, v{T+2}, v{T+3}")
    a(f"v_lshrrev_b32 v{T+3}, 1, v{T}")
    a(f"v_lshlrev_b32 v{T+3}, 4, v{T+3}")
    a(f"v_add_u32 v{T+2}, v{T+2}, v{T+3}")
    a(f"s_lshl_b32 s{t+4}, s{S_WAVE}, 5")
    a(f"s_add_u32 s{t+4}, s{t+4}, s{t}")
    a(f"s_add_u32 s{t+4}, s{t+4}, s{t+3}")
    a(f"v_add_u32 v{T+2}, s{t+4}, v{T+2}")
    a(f"v_add_u32 v{V_O+1}, 8192, v{T+2}")
    a(f"v_mov_b32 v{T+3}, 0x80000000")
    a(f"v_cmp_eq_u32 vcc, 0, v{T+1}")
    a("s_nop 1")
    a(f"v_cndmask_b32 v{V_O}, v{T+2}, v{T+3}, vcc")
    a(f"v_cmp_eq_u32 vcc, 15, v{T+1}")
    a("s_nop 1")
    a(f"v_cndmask_b32 v{V_O+2}, v{V_O+1}, v{T+3}, vcc")
    a(f"s_mov_b32 s{S_C2}, 0x4038aa3b")
    a(f"s_mov_b32 s{S_C1}, 0xbfb8aa3b")
    a(f"s_mov_b32 s{S_CL}, 0x41f00000")
    if P.diag:
        a(f"v_mov_b32 v{V_ST}, 0")
        a(f"v_mov_b32 v{V_ST+1}, 0")
        a(f"s_mov_b32 m0, 63")
        a(f"v_writelane_b32 v{V_ST+1}, s{S_RT}, m0")
        a("s_memrealtime s[88:89]")
    a("s_waitcnt vmcnt(8)")
    if P.diag: a("s_memrealtime s[90:91]")
    a("s_barrier")
    if P.diag:
        a("s_memrealtime s[92:93]")
        a("s_waitcnt lgkmcnt(0)")
        for k, sr in enumerate([84, 86, 88, 90, 92]):
            a(f"v_writelane_b32 v{V_ST+1}, s{sr}, {32+k}")
    pre = wread(0, 0, 0) + [xread(0, 0)] + wread(0, 0, 1) + [xread(0, idx) for idx in range(1, P.npre)]
    for o in pre: E.op(o)
    a(f"s_mov_b32 s{S_CNT}, 0")
    sch, m0 = build_step0(P)
    diag_open(sch, P); E.run(sch); diag_close(E, P, 0)
    a.label("L_loop")
    st0 = list(E.out)
    sch, m0a = build_step(1, P, "odd"); diag_open(sch, P); E.run(sch); diag_close(E, P, 1)
    sch, m0b = build_step(0, P, "even", m0prev=None); diag_open(sch, P); E.run(sch); diag_close(E, P, 2)
    a(f"s_add_u32 s{S_CNT}, s{S_CNT}, 2")
    a(f"s_cmp_lt_u32 s{S_CNT}, 12")
    a("s_cbranch_scc1 L_loop")
    if P.enc >= 0:
        a("s_memrealtime s[92:93]")
    sch, _ = build_step(1, P, "s13"); diag_open(sch, P); E.run(sch); diag_close(E, P, 1)
    mfl = []
    for m in range(P.h): mfl += chain(0, m, rev=P.rev)
    rl = read_list(1, 5 if P.h <= 15 else 20)
    sch, _ = build_step(0, P, "s14", wd=False, xd=False, vm=0, mfl=mfl, pb=P.pb14 if P.h <= 15 else P.pb, rl=rl, ring=False,
                        rd_end=len(mfl) - 1 - P.rdtail14, late_end=min(P.late_end, (P.pb14 if P.h <= 15 else P.pb) - 3))
    diag_open(sch, P); E.run(sch); diag_close(E, P, 2)
    if P.diag: a(f"s_add_u32 s{S_CNT}, s{S_CNT}, 2")
    sch, pend, tail = build_final(P)
    if P.h > 15:
        for k in sch.g: sch.g[k] = [x for x in sch.g[k] if x.kind != "d"]
    diag_open(sch, P); E.run(sch, canon=False); diag_close(E, P, 1)
    if P.diag:
        a(f"s_memtime s[{S_CLK}:{S_CLK+1}]"); a(f"s_memrealtime s[{S_RT}:{S_RT+1}]")
        a("s_waitcnt lgkmcnt(0)"); a("s_mov_b32 m0, 16")
        a(f"v_writelane_b32 v{V_ST}, s{S_CLK}, m0"); a(f"v_writelane_b32 v{V_ST+1}, s{S_RT}, m0")
    if pend:
        so, sw, st = pend
        E.op(so); E.op("s_nop 0")
        for x in sw: E.op(x)
        E.op(st)
    for x in tail: E.op(x)
    so, sw, st = epi3(15, P)
    E.op(so); E.op("s_nop 0")
    for x in sw: E.op(x)
    E.op(st)
    if P.diag:
        a("s_waitcnt vmcnt(0)")
        a(f"s_memtime s[{S_CLK}:{S_CLK+1}]"); a(f"s_memrealtime s[{S_RT}:{S_RT+1}]")
        a("s_waitcnt lgkmcnt(0)"); a("s_mov_b32 m0, 17")
        a(f"v_writelane_b32 v{V_ST}, s{S_CLK}, m0"); a(f"v_writelane_b32 v{V_ST+1}, s{S_RT}, m0")
        a(f"s_lshl_b32 s{S_T}, s2, 2"); a(f"s_add_u32 s{S_T}, s{S_T}, s{S_WAVE}")
        a(f"s_lshl_b32 s{S_T}, s{S_T}, 9")
        a(f"v_lshlrev_b32 v{V_T}, 3, v{V_LANE}")
        a(f"v_add_u32 v{V_T}, s{S_T}, v{V_T}")
        a(f"global_store_dwordx2 v{V_T}, v[{V_ST}:{V_ST+1}], s[{S_WSP}:{S_WSP+1}]")
    if P.enc >= 0:
        a("s_waitcnt vmcnt(0)")
        a("s_memrealtime s[94:95]")
        a("s_waitcnt lgkmcnt(0)")
        a(f"s_lshr_b32 s96, s42, 7")
        a(f"s_cmp_eq_u32 s96, {P.enc}")
        a("s_cbranch_scc0 L_end")
        a("s_sub_u32 s96, s92, s90")
        a("s_min_u32 s96, s96, 5000")
        a("s_lshl_b32 s96, s96, 3")
        a("s_add_u32 s96, s96, s94")
        a.label("L_spin")
        a("s_memrealtime s[94:95]")
        a("s_waitcnt lgkmcnt(0)")
        a("s_sub_u32 s97, s94, s96")
        a("s_cmp_lt_i32 s97, 0")
        a("s_cbranch_scc1 L_spin")
    a.label("L_end")
    a("s_endpgm")
    a.raw(footer(496, 256))
    if P.verbose: print(f"fallback waits {E.fallback}, pattern violations {E.viol}, hazard nops {E.nops}", file=sys.stderr)
    return a.text()

def parser():
    ap = argparse.ArgumentParser()
    ap.add_argument("-o", default="k4.s")
    for f in ["diag", "verbose", "wfirst", "rev"]:
        ap.add_argument("--" + f, action="store_true")
    ap.add_argument("--nopipe", dest="pipe", action="store_false")
    ap.add_argument("--stflags", type=str, default="")
    for k, d in dict(pb=80, x0=1, xstride=6, w0=2, wstride=8, rd0=0, rdtail=6, va=40, ring0=30,
                     npre=4, gB=24, rAend=20, rBlen=22, d0=1, d0stride=4, d2=70, d2stride=5, pb0=125, x0stride=4,
                     enc=-1, map=0, nxor=0, h=6, pb14=24, rdtail14=4, jit=2, L=8, late0=1, late_end=34, latewait=5, rdtail0=3).items():
        ap.add_argument("--" + k, type=int, default=d)
    return ap

if __name__ == "__main__":
    P = parser().parse_args()
    open(P.o, "w").write(gen(P))
```
